```python
import torch

def _softmax(x, axis=-1):
    return torch.softmax(x, dim=axis)

def _gelu(x):
    return torch.nn.functional.gelu(x, approximate='tanh')

def _silu(x):
    return torch.nn.functional.silu(x)

def _sigmoid(x):
    return torch.sigmoid(x)

def _layernorm(x, axis=-1, eps=1e-05):
    m = x.mean(dim=axis, keepdim=True)
    v = x.var(dim=axis, keepdim=True, unbiased=False)
    return (x - m) / torch.sqrt(v + eps)

def _scatter_add(tgt, idx, src, axis=0):
    return tgt.clone().index_add_(axis, idx, src)

def _segment_sum(src, seg, n):
    out = torch.zeros((n,) + src.shape[1:], dtype=src.dtype)
    return out.index_add_(0, seg, src)

def _pad(x, pw):
    flat = tuple((v for pair in reversed(pw) for v in pair))
    return torch.nn.functional.pad(x, flat)
kernel_name = 'adaLN_cond__mha_block_cached__swiglu_ffn__decode'

def setup_inputs():

    _w = lambda a: (lambda t: t.to(torch.bfloat16) if t.is_floating_point() else t)(torch.as_tensor(a))

    def _A_setup():
        B, Sq, D = (1, 1, 640)
        H, Sk, Dh = (32, 32768, 192)
        return {'x': _w((lambda *s: torch.randn(*s, dtype=torch.bfloat16) * 0.1)(B, Sq, D)), 'k_cache': _w((lambda *s: torch.randn(*s, dtype=torch.bfloat16) * 0.8)(B, H, Sk, Dh)), 'v_cache': _w((lambda *s: torch.randn(*s, dtype=torch.bfloat16) * 0.8)(B, H, Sk, Dh)), 'wq': _w((lambda *s: torch.randn(*s, dtype=torch.bfloat16) * 0.8)(D, H * Dh) * D ** (-0.5)), 'wo': _w((lambda *s: torch.randn(*s, dtype=torch.bfloat16) * 0.8)(H * Dh, D) * (H * Dh) ** (-0.5))}
    _A_in = _A_setup()

    def _B_setup():
        B, S, D, F = (1, 1, 640, 1536)
        return {'x': _w((lambda *s: torch.randn(*s, dtype=torch.bfloat16) * 0.1)(B, S, D)), 'w_gate': _w((lambda *s: torch.randn(*s, dtype=torch.bfloat16) * 0.1)(D, F)), 'w_up': _w((lambda *s: torch.randn(*s, dtype=torch.bfloat16) * 0.1)(D, F)), 'w_down': _w((lambda *s: torch.randn(*s, dtype=torch.bfloat16) * 0.1)(F, D))}
    _B_in = _B_setup()
    return {'A_x': _A_in['x'], 'A_k_cache': _A_in['k_cache'], 'A_v_cache': _A_in['v_cache'], 'A_wq': _A_in['wq'], 'A_wo': _A_in['wo'], 'B_x': _B_in['x'], 'B_w_gate': _B_in['w_gate'], 'B_w_up': _B_in['w_up'], 'B_w_down': _B_in['w_down'], 'c': _w((lambda *s: torch.randn(*s, dtype=torch.bfloat16) * 0.8)(1, 640) * 8.0), 'w_mod': _w((lambda *s: torch.randn(*s, dtype=torch.bfloat16) * 0.8)(640, 6 * 640) * 640 ** (-0.5) * 8.0)}

def reference(A_x, A_k_cache, A_v_cache, A_wq, A_wo, B_x, B_w_gate, B_w_up, B_w_down, c, w_mod):

    def _A_ref(x, k_cache, v_cache, wq, wo):
        B, Sq, D = x.shape
        H, Dh = (32, 192)
        q = (lambda x, *d: x.permute(*d))((x @ wq).reshape(B, Sq, H, Dh), 0, 2, 1, 3)
        scores = torch.einsum('bhqd,bhkd->bhqk', q, k_cache) * Dh ** (-0.5)
        p = _softmax(scores, axis=-1)
        o = torch.einsum('bhqk,bhkd->bhqd', p, v_cache)
        return (lambda x, *d: x.permute(*d))(o, 0, 2, 1, 3).reshape(B, Sq, H * Dh) @ wo

    def _B_ref(x, w_gate, w_up, w_down):
        g = _silu(x @ w_gate)
        u = x @ w_up
        return g * u @ w_down
    x = A_x
    mod = (_silu(c) @ w_mod).reshape(c.shape[0], 6, 1, -1)
    sa, ca, ga, sb, cb, gb = (mod[:, 0].clone(), mod[:, 1].clone(), mod[:, 2].clone(), mod[:, 3].clone(), mod[:, 4].clone(), mod[:, 5].clone())
    h = _layernorm(x, axis=-1) * (1 + ca) + sa
    x = x + ga * _A_ref(h, A_k_cache, A_v_cache, A_wq, A_wo)
    h = _layernorm(x, axis=-1) * (1 + cb) + sb
    x = x + gb * _B_ref(h, B_w_gate, B_w_up, B_w_down)
    return x
```

```python
class Asm:
    def __init__(self):
        self.lines = []
        self.lbl = 0
    def __call__(self, s):
        for l in s.strip("\n").split("\n"):
            self.lines.append("    " + l.strip())
    def label(self, name):
        self.lines.append(name + ":")
    def newlabel(self, p="L"):
        self.lbl += 1
        return f".{p}_{self.lbl}"
    def comment(self, s):
        self.lines.append("    ; " + s)
    def text(self):
        return "\n".join(self.lines) + "\n"

def vr(a, n=1):
    return f"v{a}" if n == 1 else f"v[{a}:{a+n-1}]"
def sr(a, n=1):
    return f"s{a}" if n == 1 else f"s[{a}:{a+n-1}]"

def kernel_header(A, name):
    A.lines.append(f".globl {name}")
    A.lines.append(".p2align 8")
    A.lines.append(f".type {name},@function")
    A.lines.append(f"{name}:")

def kernel_desc(name, vgpr=256, sgpr=102, accum=None):
    if accum is None:
        accum = (vgpr + 3) // 4 * 4
    return f""".amdhsa_kernel {name}
  .amdhsa_next_free_vgpr {vgpr}
  .amdhsa_next_free_sgpr {sgpr}
  .amdhsa_accum_offset {accum}
  .amdhsa_group_segment_fixed_size 0
  .amdhsa_kernarg_size 112
  .amdhsa_user_sgpr_count 2
  .amdhsa_user_sgpr_kernarg_segment_ptr 1
  .amdhsa_system_sgpr_workgroup_id_x 1
.end_amdhsa_kernel
"""

HEADER = """; Kernarg layout for this problem (112 bytes, ptrs only, base s[0:1]):
"""
```

```python
import sys
from asmlib import *

NS = int(sys.argv[2]) if len(sys.argv) > 2 else 6
NT = sys.argv[3] if len(sys.argv) > 3 else "nt"
NTF = " nt" if NT == "nt" else ""

WS_MOD = 0
WS_Q   = 0x4000
WS_ML  = 0x8000
WS_X1  = 0xA000
WS_ACT = 0xB000
WS_A   = 0x10000
WS_OP  = 0x20000
WS_S   = 0x100000
WS_SIZE = 0x400000

KV_BYTES = 402653184
LOG2E = 0x3fb8aa3b
SCALE = 0x3d93cd3a
import struct
assert struct.unpack("<I", struct.pack("<f", 192 ** -0.5))[0] == SCALE, hex(struct.unpack("<I", struct.pack("<f", 192 ** -0.5))[0])

A = Asm()

def load_ptr(sdst, off):
    A(f"s_load_dwordx2 s[{sdst}:{sdst+1}], s[0:1], {off}")
def fin_srd(sdst, nbytes):
    A(f"s_mov_b32 s{sdst+2}, {nbytes}")
    A(f"s_mov_b32 s{sdst+3}, 0x00020000")

def bf16r(v, t):
    A(f"v_cvt_pk_bf16_f32 v{t}, v{v}, v{v}")
    A(f"v_lshlrev_b32 v{v}, 16, v{t}")

def wave_reduce(v, op, s):
    for ctl in ("quad_perm:[1,0,3,2]", "quad_perm:[2,3,0,1]", "row_half_mirror", "row_mirror"):
        A("s_nop 1")
        A(f"{op}_dpp v{v}, v{v}, v{v} {ctl} row_mask:0xf bank_mask:0xf")
    A("s_nop 1")
    for i in range(4):
        A(f"v_readlane_b32 s{s+i}, v{v}, {16*i}")
    A("s_nop 1")
    A(f"v_mov_b32 v{v}, s{s}")
    for i in range(1, 4):
        A(f"{op} v{v}, s{s+i}, v{v}")

def wg_reduce_sum(v, vt, lds_off, s, vwave4):
    wave_reduce(v, "v_add_f32", s)
    A(f"ds_write_b32 v{vwave4}, v{v} offset:{lds_off}")
    A("s_waitcnt lgkmcnt(0)")
    A("s_barrier")
    A(f"v_mov_b32 v{vt}, 0")
    A(f"ds_read_b128 v[{vt+4}:{vt+7}], v{vt} offset:{lds_off}")
    A("s_waitcnt lgkmcnt(0)")
    A(f"v_add_f32 v{v}, v{vt+4}, v{vt+5}")
    A(f"v_add_f32 v{v}, v{v}, v{vt+6}")
    A(f"v_add_f32 v{v}, v{v}, v{vt+7}")
    A("s_barrier")

def silu(v, t):
    A(f"v_mul_f32 v{t}, 0xbfb8aa3b, v{v}")
    A(f"v_exp_f32 v{t}, v{t}")
    A("s_nop 0")
    A(f"v_add_f32 v{t}, 1.0, v{t}")
    A(f"v_cmp_class_f32 vcc, v{t}, v{t+3}")
    A(f"v_rcp_f32 v{t+1}, v{t}")
    A("s_nop 0")
    A(f"v_mul_f32 v{t+2}, v{v}, v{t+1}")
    A(f"v_fma_f32 v{t}, -v{t+2}, v{t}, v{v}")
    A(f"v_fma_f32 v{v}, v{t}, v{t+1}, v{t+2}")
    A(f"v_cndmask_b32 v{v}, v{v}, v{t+2}, vcc")

def fdiv(d, n, den, t0, t1):
    A(f"v_rcp_f32 v{t0}, v{den}")
    A("s_nop 0")
    A(f"v_mul_f32 v{t1}, v{n}, v{t0}")
    A(f"v_fma_f32 v{den}, -v{t1}, v{den}, v{n}")
    A(f"v_fma_f32 v{d}, v{den}, v{t0}, v{t1}")

def layer_norm_mod(xr, srd_ws, sh_off, sc_off, vt, lds_red, vwave4, vtid4, lds_x):
    m = vt; t = vt + 1; msk = vt + 2; r8 = vt + 8
    for i in range(3):
        A(f"buffer_load_dword v{vt+12+i}, v{vtid4}, s[{srd_ws}:{srd_ws+3}], 0 offen offset:{sh_off + i*1024}")
    for i in range(3):
        A(f"buffer_load_dword v{vt+15+i}, v{vtid4}, s[{srd_ws}:{srd_ws+3}], 0 offen offset:{sc_off + i*1024}")
    A(f"v_add_f32 v{m}, v{xr}, v{xr+1}")
    A(f"v_add_f32 v{m}, v{m}, v{xr+2}")
    wg_reduce_sum(m, vt + 4, lds_red, 40, vwave4)
    A(f"v_mul_f32 v{m}, 0x3acccccd, v{m}")
    A(f"v_cmp_gt_u32 vcc, 512, v{vtid4}")
    A("s_nop 1")
    A(f"v_cndmask_b32 v{msk}, 0, 1.0, vcc")
    v = vt + 3
    A(f"v_sub_f32 v{t}, v{xr}, v{m}")
    A(f"v_mul_f32 v{v}, v{t}, v{t}")
    A(f"v_sub_f32 v{t}, v{xr+1}, v{m}")
    A(f"v_fma_f32 v{v}, v{t}, v{t}, v{v}")
    A(f"v_sub_f32 v{t}, v{xr+2}, v{m}")
    A(f"v_mul_f32 v{t}, v{t}, v{msk}")
    A(f"v_fma_f32 v{v}, v{t}, v{t}, v{v}")
    wg_reduce_sum(v, vt + 4, lds_red, 40, vwave4)
    A(f"v_mul_f32 v{v}, 0x3acccccd, v{v}")
    bf16r(m, t)
    bf16r(v, t)
    A(f"v_add_f32 v{v}, 0x3727c5ac, v{v}")
    bf16r(v, t)
    A(f"v_sqrt_f32 v{v}, v{v}")
    A("s_nop 0")
    bf16r(v, t)
    A("s_waitcnt vmcnt(0)")
    for i in range(3):
        d = vt + 18 + i
        A(f"v_sub_f32 v{d}, v{xr+i}, v{m}")
        bf16r(d, t)
        A(f"v_mov_b32 v{vt+4}, v{v}")
        fdiv(d, d, vt + 4, vt + 5, vt + 6)
        bf16r(d, t)
        A(f"v_add_f32 v{vt+15+i}, 1.0, v{vt+15+i}")
        bf16r(vt + 15 + i, t)
        A(f"v_mul_f32 v{d}, v{d}, v{vt+15+i}")
        bf16r(d, t)
        A(f"v_add_f32 v{d}, v{d}, v{vt+12+i}")
        bf16r(d, t)
        A(f"ds_write_b32 v{vtid4}, v{d} offset:{lds_x + i*1024}")

def gemv_load(srd, vw, npass, voff, s_step, stride_pass, stmp):
    for p in range(npass):
        if p == 0:
            A(f"s_mov_b32 s{stmp}, 0")
        else:
            A(f"s_add_u32 s{stmp}, s{stmp}, {stride_pass}")
        A(f"buffer_load_dwordx4 v[{vw+4*p}:{vw+4*p+3}], v{voff}, s[{srd}:{srd+3}], s{stmp} offen")

def gemv_fma(vw, npass, vacc, vxaddr, lds_x, rpp, vx, vt):
    for p in range(npass):
        A(f"ds_read_b32 v{vx+p}, v{vxaddr} offset:{lds_x + p*rpp*4}")
    for i in range(8):
        A(f"v_mov_b32 v{vacc+i}, 0")
    A("s_waitcnt vmcnt(0) lgkmcnt(0)")
    for p in range(npass):
        for i in range(4):
            w = vw + 4*p + i
            A(f"v_lshlrev_b32 v{vt}, 16, v{w}")
            A(f"v_and_b32 v{vt+1}, 0xffff0000, v{w}")
            A(f"v_fmac_f32 v{vacc+2*i}, v{vx+p}, v{vt}")
            A(f"v_fmac_f32 v{vacc+2*i+1}, v{vx+p}, v{vt+1}")

def gemv_reduce(vacc, vtid, ncols, rpp, lds_red, vres, vt):
    A(f"v_lshlrev_b32 v{vt}, 5, v{vtid}")
    A(f"ds_write_b128 v{vt}, v[{vacc}:{vacc+3}] offset:{lds_red}")
    A(f"ds_write_b128 v{vt}, v[{vacc+4}:{vacc+7}] offset:{lds_red+16}")
    A("s_waitcnt lgkmcnt(0)")
    A("s_barrier")
    parts = 256 // ncols
    per = rpp // parts
    lg = ncols.bit_length() - 1
    A(f"v_and_b32 v{vt}, {ncols-1}, v{vtid}")
    A(f"v_lshrrev_b32 v{vt+1}, {lg}, v{vtid}")
    A(f"v_mul_u32_u24 v{vt+1}, {per*ncols}, v{vt+1}")
    A(f"v_add_lshl_u32 v{vt}, v{vt}, v{vt+1}, 2")
    for r in range(per):
        A(f"ds_read_b32 v{vt+2+r}, v{vt} offset:{lds_red + r*ncols*4}")
    A("s_waitcnt lgkmcnt(0)")
    A(f"v_mov_b32 v{vres}, v{vt+2}")
    for r in range(1, per):
        A(f"v_add_f32 v{vres}, v{vres}, v{vt+2+r}")
    A("s_barrier")
    A(f"v_lshlrev_b32 v{vt}, 2, v{vtid}")
    A(f"ds_write_b32 v{vt}, v{vres} offset:{lds_red}")
    A("s_waitcnt lgkmcnt(0)")
    A("s_barrier")
    A(f"v_and_b32 v{vt}, {ncols-1}, v{vtid}")
    A(f"v_lshlrev_b32 v{vt}, 2, v{vt}")
    for r in range(parts):
        A(f"ds_read_b32 v{vt+2+r}, v{vt} offset:{lds_red + r*ncols*4}")
    A("s_waitcnt lgkmcnt(0)")
    A(f"v_mov_b32 v{vres}, v{vt+2}")
    for r in range(1, parts):
        A(f"v_add_f32 v{vres}, v{vres}, v{vt+2+r}")

descs = []
name = "k_mod_kernel"
kernel_header(A, name)
A("s_cmp_ge_u32 s2, 60")
A("s_cbranch_scc1 .Lmod_done")
load_ptr(4, 72); load_ptr(8, 80); load_ptr(12, 104)
A("v_lshlrev_b32 v1, 1, v0")
A("v_lshlrev_b32 v2, 2, v0")
A("v_lshrrev_b32 v3, 3, v0")
A("v_and_b32 v4, 7, v0")
A("s_waitcnt lgkmcnt(0)")
fin_srd(4, 1280); fin_srd(8, 640*3840*2); fin_srd(12, WS_SIZE)
for i in range(3):
    A(f"buffer_load_ushort v{10+i}, v1, s[4:7], 0 offen offset:{512*i}")
A("s_movk_i32 s16, 7680")
A("v_mul_lo_u32 v5, v3, s16")
A("v_lshl_add_u32 v5, v4, 4, v5")
A("s_lshl_b32 s17, s2, 7")
A("v_add_u32 v5, s17, v5")
gemv_load(8, 32, 20, 5, None, 32*7680, 18)
A("s_waitcnt vmcnt(20)")
A("v_mov_b32 v17, 0x200")
for i in range(3):
    A(f"v_lshlrev_b32 v{10+i}, 16, v{10+i}")
    silu(10+i, 14)
    bf16r(10+i, 14)
    A(f"ds_write_b32 v2, v{10+i} offset:{1024*i}")
A("s_waitcnt lgkmcnt(0)")
A("s_barrier")
A("v_lshlrev_b32 v6, 2, v3")
gemv_fma(32, 20, 120, 6, 0, 32, 130, 14)
gemv_reduce(120, 0, 64, 32, 4096, 9, 160)
bf16r(9, 14)
A("v_cmp_gt_u32 vcc, 64, v0")
A("s_and_saveexec_b64 s[20:21], vcc")
A("s_cbranch_execz .Lmod_done")
A("s_lshl_b32 s17, s2, 8")
A(f"buffer_store_dword v9, v2, s[12:15], s17 offen offset:{WS_MOD}")
A.label(".Lmod_done")
A("s_endpgm")
descs.append(kernel_desc(name, 200))

name = "k_q_kernel"
kernel_header(A, name)
A("s_cmp_ge_u32 s2, 96")
A("s_cbranch_scc1 .Lq_done")
load_ptr(4, 0); load_ptr(8, 24); load_ptr(12, 104)
A("v_lshlrev_b32 v1, 1, v0")
A("v_lshlrev_b32 v2, 2, v0")
A("v_lshrrev_b32 v3, 3, v0")
A("v_and_b32 v4, 7, v0")
A("v_lshrrev_b32 v7, 6, v0")
A("v_lshlrev_b32 v7, 2, v7")
A("s_waitcnt lgkmcnt(0)")
fin_srd(4, 1280); fin_srd(8, 640*6144*2); fin_srd(12, WS_SIZE)
for i in range(3):
    A(f"buffer_load_ushort v{10+i}, v1, s[4:7], 0 offen offset:{512*i}")
A("s_movk_i32 s16, 12288")
A("v_mul_lo_u32 v5, v3, s16")
A("v_lshl_add_u32 v5, v4, 4, v5")
A("s_lshl_b32 s17, s2, 7")
A("v_add_u32 v5, s17, v5")
gemv_load(8, 32, 20, 5, None, 32*12288, 18)
A("s_waitcnt vmcnt(20)")
for i in range(3):
    A(f"v_lshlrev_b32 v{10+i}, 16, v{10+i}")
layer_norm_mod(10, 12, WS_MOD + 0, WS_MOD + 2560, 160, 4000, 7, 2, 0)
A("s_waitcnt lgkmcnt(0)")
A("s_barrier")
A("v_lshlrev_b32 v6, 2, v3")
gemv_fma(32, 20, 120, 6, 0, 32, 130, 14)
gemv_reduce(120, 0, 64, 32, 4096, 9, 160)
A("v_cvt_pk_bf16_f32 v9, v9, v9")
A("v_cmp_gt_u32 vcc, 64, v0")
A("s_and_saveexec_b64 s[20:21], vcc")
A("s_cbranch_execz .Lq_done")
A("s_lshl_b32 s17, s2, 7")
A(f"buffer_store_short v9, v1, s[12:15], s17 offen offset:{WS_Q}")
A.label(".Lq_done")
A("s_endpgm")
descs.append(kernel_desc(name, 200))

RING = NS * 6144
def stream_setup(kv_off):
    load_ptr(4, kv_off); load_ptr(12, 104)
    A("v_lshrrev_b32 v1, 6, v0")
    A("s_nop 0")
    A("v_readfirstlane_b32 s20, v1")
    A("v_and_b32 v1, 63, v0")
    A("s_lshr_b32 s25, s2, 3")
    A("s_and_b32 s26, s2, 7")
    A("s_mul_i32 s21, s25, 12582912")
    A("s_lshl_b32 s27, s26, 2")
    A("s_add_u32 s27, s27, s20")
    A("s_mul_i32 s28, s27, 393216")
    A("s_add_u32 s21, s21, s28")
    A("s_add_u32 s24, s21, 393216")
    A(f"s_mul_i32 s23, s20, {RING}")
    A("s_mov_b32 s22, 0")
    for i in range(3):
        A(f"v_add_u32 v{2+i}, {64*i}, v1")
        A(f"v_mul_u32_u24 v{2+i}, 2731, v{2+i}")
        A(f"v_lshrrev_b32 v{2+i}, 16, v{2+i}")
        A(f"v_and_b32 v{2+i}, 6, v{2+i}")
        A(f"v_lshlrev_b32 v{2+i}, 4, v{2+i}")
        A(f"v_lshlrev_b32 v5, 4, v1")
        A(f"v_xor_b32 v{2+i}, v{2+i}, v5")
    A("s_waitcnt lgkmcnt(0)")
    fin_srd(4, KV_BYTES); fin_srd(12, WS_SIZE)

def issue_tile():
    A("s_cmp_lt_u32 s21, s24")
    A("s_cselect_b32 s29, s21, 0x80000000")
    A("s_add_u32 m0, s23, s22")
    A("s_add_u32 s30, s29, 3072")
    for i in range(3):
        A(f"buffer_load_dwordx4 v{2+i}, s[4:7], s29 offen offset:{1024*i} {NTF} lds")
    A("s_add_u32 m0, m0, 3072")
    A("s_add_u32 s21, s21, 6144")
    for i in range(3):
        A(f"buffer_load_dwordx4 v{2+i}, s[4:7], s30 offen offset:{1024*i} {NTF} lds")

def adv_slot():
    A("s_add_u32 s22, s22, 6144")
    A(f"s_cmp_eq_u32 s22, {RING}")
    A("s_cselect_b32 s22, 0, s22")

SC_LDS = 4 * RING
name = "k_kpass_kernel"
kernel_header(A, name)
A("s_cmp_ge_u32 s2, 256")
A("s_cbranch_scc1 .Lkp_done")
stream_setup(8)
for s in range(NS):
    issue_tile(); adv_slot()
A("v_lshrrev_b32 v6, 4, v1")
A("v_and_b32 v7, 15, v1")
A("v_lshlrev_b32 v8, 4, v6")
A("s_mul_i32 s31, s25, 384")
for st in range(6):
    A(f"buffer_load_dwordx4 v[{16+4*st}:{19+4*st}], v8, s[12:15], s31 offen offset:{WS_Q + 64*st}")
A("v_and_b32 v9, 6, v7")
A("v_xor_b32 v10, v6, v9")
A("v_xor_b32 v11, 4, v10")
A("v_mul_u32_u24 v12, 384, v7")
A("v_add_u32 v12, s23, v12")
A("v_lshl_add_u32 v10, v10, 4, v12")
A("v_lshl_add_u32 v11, v11, 4, v12")
A(f"s_waitcnt vmcnt(0)" if False else f"s_nop 0")
QA = 64
A(f"s_waitcnt vmcnt(0)")
for t in range(4):
    A(f"v_cmp_eq_u32 vcc, {4*t}, v7")
    A("s_nop 1")
    for r in range(24):
        A(f"v_cndmask_b32 v{QA+24*t+r}, 0, v{16+r}, vcc")
A("v_mov_b32 v13, 0xff800000")
A("v_lshlrev_b32 v14, 1, v1")
A(f"s_lshl_b32 s32, s20, 11")
A(f"s_add_u32 s32, s32, {SC_LDS}")
A("v_add_u32 v14, s32, v14")
A("s_mov_b32 s33, 0")
KB = 16
ACC = 40
A.label(".Lkp_loop")
for t in range(4):
    A(f"s_waitcnt vmcnt({6*(NS-1)})")
    A("v_add_u32 v160, s22, v10")
    A("v_add_u32 v161, s22, v11")
    for st in range(6):
        A(f"ds_read_b128 v[{KB+4*st}:{KB+4*st+3}], v{160 + (st&1)} offset:{(st>>1)*128}")
    A("s_waitcnt lgkmcnt(0)")
    issue_tile(); adv_slot()
    for st in range(6):
        c = "0" if (t == 0 and st == 0) else f"v[{ACC}:{ACC+3}]"
        A(f"v_mfma_f32_16x16x32_bf16 v[{ACC}:{ACC+3}], v[{QA+24*t+4*st}:{QA+24*t+4*st+3}], v[{KB+4*st}:{KB+4*st+3}], {c}")
A("s_nop 7")
A("s_nop 1")
A(f"v_cvt_pk_bf16_f32 v44, v{ACC}, v{ACC}")
A("v_lshlrev_b32 v44, 16, v44")
A(f"v_mul_f32 v44, {SCALE}, v44")
A("v_cvt_pk_bf16_f32 v44, v44, v44")
A("ds_write_b16 v14, v44")
A("v_lshlrev_b32 v44, 16, v44")
A("v_max_f32 v13, v13, v44")
A("v_add_u32 v14, 128, v14")
A("s_add_u32 s33, s33, 1")
A("s_cmp_lt_u32 s33, 16")
A("s_cbranch_scc1 .Lkp_loop")
wave_reduce(13, "v_max_f32", 40)
A("v_subrev_u32 v14, 2048, v14")
A("s_waitcnt lgkmcnt(0)")
A("v_lshlrev_b32 v15, 2, v1")
A("v_add_u32 v15, s32, v15")
for i in range(8):
    A(f"ds_read_b32 v{16+i}, v15 offset:{256*i}")
A("v_mov_b32 v45, 0")
A("s_waitcnt lgkmcnt(0)")
A("s_lshl_b32 s34, s25, 16")
A("s_lshl_b32 s35, s27, 11")
A("s_add_u32 s34, s34, s35")
A(f"s_add_u32 s34, s34, {WS_S}")
A("v_lshlrev_b32 v46, 2, v1")
for i in range(8):
    A(f"buffer_store_dword v{16+i}, v46, s[12:15], s34 offen offset:{256*i}")
for i in range(8):
    A(f"v_lshlrev_b32 v47, 16, v{16+i}")
    A(f"v_and_b32 v48, 0xffff0000, v{16+i}")
    for r in (47, 48):
        A(f"v_sub_f32 v{r}, v{r}, v13")
        A(f"v_mul_f32 v{r}, {LOG2E}, v{r}")
        A(f"v_exp_f32 v{r}, v{r}")
        A("s_nop 0")
        A(f"v_add_f32 v45, v45, v{r}")
wave_reduce(45, "v_add_f32", 40)
A("v_mov_b32 v44, v13")
A("s_lshl_b32 s34, s2, 2")
A("s_add_u32 s34, s34, s20")
A("s_lshl_b32 s34, s34, 3")
A("v_mov_b32 v46, 0")
A("v_cmp_eq_u32 vcc, 0, v1")
A("s_and_saveexec_b64 s[36:37], vcc")
A(f"buffer_store_dwordx2 v[44:45], v46, s[12:15], s34 offen offset:{WS_ML}")
A.label(".Lkp_done")
A("s_endpgm")
descs.append(kernel_desc(name, 168))

name = "k_vpass_kernel"
kernel_header(A, name)
A("s_cmp_ge_u32 s2, 256")
A("s_cbranch_scc1 .Lvp_done")
stream_setup(16)
for s in range(NS):
    issue_tile(); adv_slot()
A("v_and_b32 v6, 31, v1")
A("v_lshlrev_b32 v6, 3, v6")
A("s_lshl_b32 s31, s25, 8")
A(f"buffer_load_dwordx2 v[16:17], v6, s[12:15], s31 offen offset:{WS_ML}")
A("s_lshl_b32 s34, s25, 16")
A("s_lshl_b32 s35, s27, 11")
A("s_add_u32 s34, s34, s35")
A(f"s_add_u32 s34, s34, {WS_S}")
A("v_lshlrev_b32 v46, 2, v1")
for i in range(8):
    A(f"buffer_load_dword v{20+i}, v46, s[12:15], s34 offen offset:{256*i}")
A("s_waitcnt vmcnt(0)")
A("v_mov_b32 v18, v16")
wave_reduce(18, "v_max_f32", 40)
A("v_sub_f32 v19, v16, v18")
A(f"v_mul_f32 v19, {LOG2E}, v19")
A("v_exp_f32 v19, v19")
A("s_nop 0")
A("v_mul_f32 v19, v19, v17")
wave_reduce(19, "v_add_f32", 40)
A("v_mul_f32 v19, 0.5, v19")
A("v_and_b32 v30, 15, v1")
A("v_lshlrev_b32 v30, 1, v30")
A("v_bfe_u32 v31, v30, 2, 2")
A("v_lshlrev_b32 v31, 3, v31")
A("v_bfe_u32 v32, v30, 4, 1")
A("v_lshl_add_u32 v31, v32, 2, v31")
A("v_and_b32 v32, 3, v30")
A("v_add_u32 v31, v31, v32")
A("v_lshlrev_b32 v31, 1, v31")
A("v_lshrrev_b32 v32, 4, v1")
A("v_lshl_add_u32 v31, v32, 6, v31")
A(f"s_lshl_b32 s32, s20, 11")
A(f"s_add_u32 s32, s32, {SC_LDS}")
A("v_add_u32 v31, s32, v31")
for i in range(8):
    A(f"v_lshlrev_b32 v47, 16, v{20+i}")
    A(f"v_and_b32 v48, 0xffff0000, v{20+i}")
    for r in (47, 48):
        A(f"v_sub_f32 v{r}, v{r}, v18")
        A(f"v_mul_f32 v{r}, {LOG2E}, v{r}")
        A(f"v_exp_f32 v{r}, v{r}")
        A("s_nop 0")
        A(f"v_mov_b32 v49, v19")
        fdiv(r, r, 49, 50, 51)
    A("v_cvt_pk_bf16_f32 v47, v47, v48")
    A(f"ds_write_b32 v31, v47 offset:{256*i}")
A("v_lshrrev_b32 v6, 4, v1")
A("v_bfe_u32 v7, v1, 2, 2")
A("v_and_b32 v8, 3, v1")
A("v_and_b32 v9, 1, v6")
A("v_lshlrev_b32 v9, 1, v9")
A("v_lshrrev_b32 v10, 1, v7")
A("v_or_b32 v9, v9, v10")
A("v_lshl_add_u32 v10, v6, 2, v7")
A("v_mul_u32_u24 v10, 384, v10")
A("v_lshl_add_u32 v10, v8, 3, v10")
A("v_add_u32 v10, s23, v10")
for bb in range(4):
    A(f"v_xor_b32 v11, {bb}, v9")
    A(f"v_lshl_add_u32 v{12+bb}, v11, 5, v10")
A("v_lshlrev_b32 v16, 4, v6")
A("v_add_u32 v16, s32, v16")
OACC = 64
for i in range(48):
    A(f"v_mov_b32 v{OACC+i}, 0")
A("s_waitcnt lgkmcnt(0)")
A("s_mov_b32 s33, 0")
VB = 112
A.label(".Lvp_loop")
A("ds_read_b128 v[20:23], v16")
A("v_add_u32 v16, 64, v16")
for h in range(2):
    A(f"s_waitcnt vmcnt({6*(NS-1)})")
    for bb in range(4):
        A(f"v_add_u32 v{160+bb}, s22, v{12+bb}")
    for b in range(12):
        A(f"ds_read_b64_tr_b16 v[{VB+4*b+2*h}:{VB+4*b+2*h+1}], v{160+(b&3)} offset:{(b>>2)*128}")
    A("s_waitcnt lgkmcnt(0)")
    issue_tile(); adv_slot()
for b in range(12):
    A(f"v_mfma_f32_16x16x32_bf16 v[{OACC+4*b}:{OACC+4*b+3}], v[20:23], v[{VB+4*b}:{VB+4*b+3}], v[{OACC+4*b}:{OACC+4*b+3}]")
A("s_add_u32 s33, s33, 1")
A("s_cmp_lt_u32 s33, 32")
A("s_cbranch_scc1 .Lvp_loop")
A("s_nop 7")
A("s_nop 1")
A("s_waitcnt vmcnt(0)")
A("s_barrier")
A("v_lshlrev_b32 v6, 2, v1")
A("s_mul_i32 s34, s20, 768")
A("v_add_u32 v6, s34, v6")
A("s_mov_b64 s[36:37], exec")
A("s_mov_b64 exec, 0xffff")
for b in range(12):
    A(f"ds_write_b32 v6, v{OACC+4*b} offset:{64*b}")
A("s_mov_b64 exec, s[36:37]")
A("s_waitcnt lgkmcnt(0)")
A("s_barrier")
A("v_lshlrev_b32 v6, 2, v0")
for w in range(4):
    A(f"ds_read_b32 v{20+w}, v6 offset:{768*w}")
A("s_waitcnt lgkmcnt(0)")
A("v_add_f32 v20, v20, v21")
A("v_add_f32 v22, v22, v23")
A("v_add_f32 v20, v20, v22")
A("v_cmp_gt_u32 vcc, 192, v0")
A("s_and_saveexec_b64 s[36:37], vcc")
A("s_cbranch_execz .Lvp_done")
A("s_mul_i32 s34, s2, 768")
A(f"buffer_store_dword v20, v6, s[12:15], s34 offen offset:{WS_OP}")
A.label(".Lvp_done")
A("s_endpgm")
descs.append(kernel_desc(name, 168))

name = "k_wo_kernel"
kernel_header(A, name)
A("s_cmp_ge_u32 s2, 160")
A("s_cbranch_scc1 .Lwo_done")
load_ptr(8, 32); load_ptr(12, 104)
A("s_lshr_b32 s22, s2, 4")
A("s_and_b32 s23, s2, 15")
A("v_lshlrev_b32 v2, 2, v0")
A("v_lshrrev_b32 v3, 3, v0")
A("v_and_b32 v4, 7, v0")
A("s_waitcnt lgkmcnt(0)")
fin_srd(8, 6144*640*2); fin_srd(12, WS_SIZE)
A("v_mul_u32_u24 v5, 1280, v3")
A("v_lshl_add_u32 v5, v4, 4, v5")
A("s_mul_i32 s17, s23, 491520")
A("s_lshl_b32 s16, s22, 7")
A("s_add_u32 s17, s17, s16")
A("v_add_u32 v5, s17, v5")
gemv_load(8, 32, 12, 5, None, 32*1280, 18)
for i in range(2):
    A(f"v_add_u32 v6, {256*i}, v0")
    A("v_cmp_le_u32 vcc, 192, v6")
    A("s_nop 1")
    A("v_cndmask_b32 v7, 0, 1, vcc")
    A("v_mul_u32_u24 v8, 192, v7")
    A("v_sub_u32 v6, v6, v8")
    A("v_mul_u32_u24 v8, 6144, v7")
    A("v_lshl_add_u32 v6, v6, 2, v8")
    A("s_mul_i32 s16, s23, 12288")
    A(f"s_add_u32 s16, s16, {WS_OP}")
    for sp in range(8):
        A(f"buffer_load_dword v{100+8*i+sp}, v6, s[12:15], s16 offen offset:{768*sp}")
A("s_waitcnt vmcnt(0)")
for i in range(2):
    b = 100 + 8*i
    for sp in range(1, 8):
        A(f"v_add_f32 v{b}, v{b}, v{b+sp}")
    bf16r(b, 14)
    A(f"ds_write_b32 v2, v{b} offset:{1024*i}")
A("s_waitcnt lgkmcnt(0)")
A("s_barrier")
A("v_lshlrev_b32 v6, 2, v3")
gemv_fma(32, 12, 120, 6, 0, 32, 130, 14)
gemv_reduce(120, 0, 64, 32, 4096, 9, 160)
A("v_cmp_gt_u32 vcc, 64, v0")
A("s_and_saveexec_b64 s[20:21], vcc")
A("s_cbranch_execz .Lwo_done")
A("s_mul_i32 s17, s23, 2560")
A("s_lshl_b32 s16, s22, 8")
A("s_add_u32 s17, s17, s16")
A(f"buffer_store_dword v9, v2, s[12:15], s17 offen offset:{WS_A}")
A.label(".Lwo_done")
A("s_endpgm")
descs.append(kernel_desc(name, 200))

name = "k_ffn1_kernel"
kernel_header(A, name)
A("s_cmp_ge_u32 s2, 48")
A("s_cbranch_scc1 .Lf1_done")
load_ptr(4, 0); load_ptr(8, 48); load_ptr(24, 56); load_ptr(12, 104)
A("v_lshlrev_b32 v1, 1, v0")
A("v_lshlrev_b32 v2, 2, v0")
A("v_lshrrev_b32 v3, 2, v0")
A("v_and_b32 v4, 3, v0")
A("v_lshrrev_b32 v7, 6, v0")
A("v_lshlrev_b32 v7, 2, v7")
A("s_waitcnt lgkmcnt(0)")
fin_srd(4, 1280); fin_srd(8, 640*1536*2); fin_srd(24, 640*1536*2); fin_srd(12, WS_SIZE)
A("v_mul_u32_u24 v5, 3072, v3")
A("v_lshl_add_u32 v5, v4, 4, v5")
A("s_lshl_b32 s17, s2, 6")
A("v_add_u32 v5, s17, v5")
gemv_load(8, 32, 10, 5, None, 64*3072, 18)
gemv_load(24, 72, 10, 5, None, 64*3072, 18)
for i in range(3):
    A(f"buffer_load_ushort v{10+i}, v1, s[4:7], 0 offen offset:{512*i}")
A(f"s_mov_b32 s16, {WS_A}")
for kb in range(16):
    for i in range(3):
        A(f"buffer_load_dword v{200+3*kb+i}, v2, s[12:15], s16 offen offset:{1024*i}")
    A("s_add_u32 s16, s16, 2560")
for i in range(3):
    A(f"buffer_load_dword v{196+i}, v2, s[12:15], 0 offen offset:{WS_MOD + 2*2560 + 1024*i}")
A("s_waitcnt vmcnt(0)")
A("v_cmp_gt_u32 vcc, 512, v2")
for i in range(3):
    b = 200 + i
    for kb in range(1, 16):
        A(f"v_add_f32 v{b}, v{b}, v{200+3*kb+i}")
    bf16r(b, 14)
    A(f"v_mul_f32 v{b}, v{b}, v{196+i}")
    bf16r(b, 14)
    A(f"v_lshlrev_b32 v{10+i}, 16, v{10+i}")
    A(f"v_add_f32 v{10+i}, v{10+i}, v{b}")
    bf16r(10+i, 14)
A("v_cndmask_b32 v12, 0, v12, vcc")
A("s_cmp_lg_u32 s2, 0")
A("s_cbranch_scc1 .Lf1_nox1")
for i in range(3):
    if i == 2:
        A("s_and_saveexec_b64 s[20:21], vcc")
    A(f"buffer_store_dword v{10+i}, v2, s[12:15], 0 offen offset:{WS_X1 + 1024*i}")
A("s_mov_b64 exec, s[20:21]")
A.label(".Lf1_nox1")
layer_norm_mod(10, 12, WS_MOD + 3*2560, WS_MOD + 4*2560, 160, 4000, 7, 2, 0)
A("s_waitcnt lgkmcnt(0)")
A("s_barrier")
A("v_lshlrev_b32 v6, 2, v3")
gemv_fma(32, 10, 120, 6, 0, 64, 130, 14)
gemv_reduce(120, 0, 32, 64, 4096, 9, 160)
A("s_barrier")
gemv_fma(72, 10, 120, 6, 0, 64, 130, 14)
gemv_reduce(120, 0, 32, 64, 4096, 8, 160)
bf16r(9, 14); bf16r(8, 14)
A("v_mov_b32 v17, 0x200")
silu(9, 14)
bf16r(9, 14)
A("v_mul_f32 v9, v9, v8")
bf16r(9, 14)
A("v_cmp_gt_u32 vcc, 32, v0")
A("s_and_saveexec_b64 s[20:21], vcc")
A("s_cbranch_execz .Lf1_done")
A("s_lshl_b32 s17, s2, 7")
A(f"buffer_store_dword v9, v2, s[12:15], s17 offen offset:{WS_ACT}")
A.label(".Lf1_done")
A("s_endpgm")
descs.append(kernel_desc(name, 256))

name = "k_ffn2_kernel"
kernel_header(A, name)
A("s_cmp_ge_u32 s2, 40")
A("s_cbranch_scc1 .Lf2_done")
load_ptr(8, 64); load_ptr(12, 104); load_ptr(4, 88)
A("v_lshlrev_b32 v1, 1, v0")
A("v_lshlrev_b32 v2, 2, v0")
A("v_lshrrev_b32 v3, 1, v0")
A("v_and_b32 v4, 1, v0")
A("s_waitcnt lgkmcnt(0)")
fin_srd(8, 1536*640*2); fin_srd(12, WS_SIZE); fin_srd(4, 1280)
A("v_mul_u32_u24 v5, 1280, v3")
A("v_lshl_add_u32 v5, v4, 4, v5")
A("s_lshl_b32 s17, s2, 5")
A("v_add_u32 v5, s17, v5")
gemv_load(8, 32, 12, 5, None, 128*1280, 18)
for i in range(6):
    A(f"buffer_load_dword v{100+i}, v2, s[12:15], 0 offen offset:{WS_ACT + 1024*i}")
A("s_lshl_b32 s17, s2, 6")
A(f"buffer_load_dword v110, v2, s[12:15], s17 offen offset:{WS_X1}")
A(f"buffer_load_dword v111, v2, s[12:15], s17 offen offset:{WS_MOD + 5*2560}")
A("s_waitcnt vmcnt(0)")
for i in range(6):
    A(f"ds_write_b32 v2, v{100+i} offset:{1024*i}")
A("s_waitcnt lgkmcnt(0)")
A("s_barrier")
A("v_lshlrev_b32 v6, 2, v3")
gemv_fma(32, 12, 120, 6, 0, 128, 130, 14)
gemv_reduce(120, 0, 16, 128, 8192, 9, 160)
bf16r(9, 14)
A("v_mul_f32 v9, v9, v111")
bf16r(9, 14)
A("v_add_f32 v9, v9, v110")
A("v_cvt_pk_bf16_f32 v9, v9, v9")
A("v_cmp_gt_u32 vcc, 16, v0")
A("s_and_saveexec_b64 s[20:21], vcc")
A("s_cbranch_execz .Lf2_done")
A("s_lshl_b32 s17, s2, 5")
A("buffer_store_short v9, v1, s[4:7], s17 offen")
A.label(".Lf2_done")
A("s_endpgm")
descs.append(kernel_desc(name, 200))

LDS_STREAM = 4*RING + 8192
launch = f"""; @launch kernel=k_mod_kernel grid=(60,1,1) block=(256,1,1) lds=16384
; @launch kernel=k_q_kernel grid=(96,1,1) block=(256,1,1) lds=16384
; @launch kernel=k_kpass_kernel grid=(256,1,1) block=(256,1,1) lds={LDS_STREAM}
; @launch kernel=k_vpass_kernel grid=(256,1,1) block=(256,1,1) lds={LDS_STREAM}
; @launch kernel=k_wo_kernel grid=(160,1,1) block=(256,1,1) lds=16384
; @launch kernel=k_ffn1_kernel grid=(48,1,1) block=(256,1,1) lds=16384
; @launch kernel=k_ffn2_kernel grid=(40,1,1) block=(256,1,1) lds=16384
"""
def fix_offsets(text):
    import re
    outl = []
    for line in text.split("\n"):
        m = re.match(r"^(\s*buffer_\w+ .*, s\[\d+:\d+\]), (\S+) offen offset:(\d+)(.*)$", line)
        if m and int(m.group(3)) >= 4096:
            off = int(m.group(3)); so = m.group(2)
            if so == "0":
                outl.append(f"    s_mov_b32 s99, {off}")
            else:
                outl.append(f"    s_add_u32 s99, {so}, {off}")
            outl.append(f"{m.group(1)}, s99 offen{m.group(4)}")
        else:
            outl.append(line)
    return "\n".join(outl)
body = fix_offsets(A.text())
out = HEADER + launch + '.amdgcn_target "amdgcn-amd-amdhsa--gfx950"\n.text\n' + body + '.section .rodata,"a"\n' + "".join(".p2align 6\n" + d for d in descs)
open(sys.argv[1], "w").write(out)
```

```python
import sys, struct, re
from asmlib import *

NS = int(sys.argv[2]) if len(sys.argv) > 2 else 6
FILLW = int(sys.argv[4]) if len(sys.argv) > 4 else 2
PREF = int(sys.argv[5]) if len(sys.argv) > 5 else 0
LATEFILL = FILLW == 0
if LATEFILL: FILLW = 6
NAME = "adaLN_cond__mha_block_cached__swiglu_ffn__decode_kernel"

WS_MOD = 0x0000
WS_Q   = 0x4000
WS_ML  = 0x8000
WS_OP  = 0x10000
WS_AP  = 0x70000
WS_ACT = 0x7A000
WS_MODT = 0xC000
WS_QT = 0x80000
WS_SIZE = 0x200000
KV_BYTES = 402653184
HEADB = 12582912
LOG2E = 0x3fb8aa3b
SCALE = 0x3d93cd3a
RING = NS * 6144
CAP = 14
SCW = CAP * 128
LDS_SC = 4 * RING
LDS_SCB = LDS_SC + 4 * SCW
LDS_MISC = LDS_SC + 8 * SCW
LDS_TOTAL = LDS_MISC + 2048
MODL = LDS_SCB
QLDS = LDS_SCB + 5120
QFLAG = LDS_SCB + 5888
MFLAG = LDS_SCB + 5892
import os
S_STATIC = int(os.environ.get('S_STATIC', '6'))
POOL = 512 - 64 * S_STATIC
POOLSH = max(POOL, 1).bit_length() - 1
PQ = LDS_MISC + 1024 + 16
PQE = LDS_MISC + 1280
BATCH = int(os.environ.get('BATCH', '4'))
assert LDS_TOTAL <= 163840
SPIN_LIMIT = 400000

A = Asm()
def L(p): return A.newlabel(p)
STAMP = len(sys.argv) > 3 and sys.argv[3] == "stamp"
WS_TS = 0x100000
def stamp(idx):
    if not STAMP: return
    A("s_memrealtime s[46:47]" if False else "s_memrealtime s[36:37]")
    A("s_waitcnt lgkmcnt(0)")
    A("v_mov_b32 v58, s36")
    A("v_mov_b32 v59, s37")
    A("v_mov_b32 v60, 0")
    A("s_lshl_b32 s36, s2, 3")
    A("s_add_u32 s36, s36, s20")
    A("s_lshl_b32 s36, s36, 8")
    A(f"s_add_u32 s36, s36, {WS_TS + 8*idx}")
    A("s_mov_b64 exec, 1")
    A("buffer_store_dwordx2 v[58:59], v60, s[8:11], s36 offen")
    A("s_mov_b64 exec, -1")

def bf16r(v, t):
    A(f"v_cvt_pk_bf16_f32 v{t}, v{v}, v{v}")
    A(f"v_lshlrev_b32 v{v}, 16, v{t}")

def row_reduce(vs, op):
    for ctl in ("quad_perm:[1,0,3,2]", "quad_perm:[2,3,0,1]", "row_half_mirror", "row_mirror"):
        if len(vs) < 3:
            A("s_nop 1")
        for v in vs:
            A(f"{op}_dpp v{v}, v{v}, v{v} {ctl} row_mask:0xf bank_mask:0xf")

def wave_reduce(v, op, s=40):
    row_reduce([v], op)
    A("s_nop 1")
    for i in range(4):
        A(f"v_readlane_b32 s{s+i}, v{v}, {16*i}")
    A("s_nop 1")
    A(f"v_mov_b32 v{v}, s{s}")
    for i in range(1, 4):
        A(f"{op} v{v}, s{s+i}, v{v}")

def fdiv(d, n, den, t0, t1):
    A(f"v_rcp_f32 v{t0}, v{den}")
    A("s_nop 0")
    A(f"v_mul_f32 v{t1}, v{n}, v{t0}")
    A(f"v_fma_f32 v{den}, -v{t1}, v{den}, v{n}")
    A(f"v_fma_f32 v{d}, v{den}, v{t0}, v{t1}")

def silu(v, t):
    A(f"v_mov_b32 v{t+3}, 0x200")
    A(f"v_mul_f32 v{t}, 0xbfb8aa3b, v{v}")
    A(f"v_exp_f32 v{t}, v{t}")
    A("s_nop 0")
    A(f"v_add_f32 v{t}, 1.0, v{t}")
    A(f"v_cmp_class_f32 vcc, v{t}, v{t+3}")
    A(f"v_rcp_f32 v{t+1}, v{t}")
    A("s_nop 0")
    A(f"v_mul_f32 v{t+2}, v{v}, v{t+1}")
    A(f"v_fma_f32 v{t}, -v{t+2}, v{t}, v{v}")
    A(f"v_fma_f32 v{v}, v{t}, v{t+1}, v{t+2}")
    A(f"v_cndmask_b32 v{v}, v{v}, v{t+2}, vcc")

def desentinel(v, t):
    A(f"v_mov_b32 v{t}, 0x7fc00000")
    A(f"v_cmp_eq_u32 vcc, -1, v{v}")
    A("s_nop 1")
    A(f"v_cndmask_b32 v{v}, v{v}, v{t}, vcc")

def poll_loop(issue, regs, vt, scnt=39):
    lp = L("poll"); done = L("polld")
    A(f"s_mov_b32 s{scnt}, 0")
    A.label(lp)
    issue()
    A("s_waitcnt vmcnt(0)")
    rs = list(regs)
    A(f"v_mov_b32 v{vt}, v{rs[0]}")
    i = 1
    while i < len(rs):
        if i + 1 < len(rs):
            A(f"v_max3_u32 v{vt}, v{vt}, v{rs[i]}, v{rs[i+1]}"); i += 2
        else:
            A(f"v_max_u32 v{vt}, v{vt}, v{rs[i]}"); i += 1
    A(f"v_cmp_eq_u32 vcc, -1, v{vt}")
    A(f"s_cbranch_vccz {done}")
    A(f"s_add_u32 s{scnt}, s{scnt}, 1")
    A(f"s_cmp_gt_u32 s{scnt}, {SPIN_LIMIT}")
    A(f"s_cbranch_scc1 {done}")
    A("s_sleep 1")
    A(f"s_branch {lp}")
    A.label(done)

def poll_counter(off, target, vz, vt, scnt=39):
    lp = L("pc"); done = L("pcd")
    A(f"s_mov_b32 s{scnt}, 0")
    A.label(lp)
    A(f"buffer_load_dword v{vt}, v{vz}, s[12:15], 0 offen offset:{off} sc1")
    A("s_waitcnt vmcnt(0)")
    A(f"v_readfirstlane_b32 s38, v{vt}")
    A("s_nop 0")
    A(f"s_cmp_ge_u32 s38, {target}")
    A(f"s_cbranch_scc1 {done}")
    A(f"s_add_u32 s{scnt}, s{scnt}, 1")
    A(f"s_cmp_gt_u32 s{scnt}, {SPIN_LIMIT}")
    A(f"s_cbranch_scc1 {done}")
    A("s_sleep 1")
    A(f"s_branch {lp}")
    A.label(done)

def get_nonce(vz, vt, scnt=39):
    lp = L("gn"); done = L("gnd")
    A(f"s_mov_b32 s{scnt}, 0")
    A.label(lp)
    A(f"buffer_load_dword v{vt}, v{vz}, s[12:15], 0 offen sc1")
    A("s_waitcnt vmcnt(0)")
    A(f"v_readfirstlane_b32 s70, v{vt}")
    A("s_nop 0")
    A(f"s_cmp_lg_u32 s70, 0")
    A(f"s_cbranch_scc1 {done}")
    A(f"s_add_u32 s{scnt}, s{scnt}, 1")
    A(f"s_cmp_gt_u32 s{scnt}, {SPIN_LIMIT}")
    A(f"s_cbranch_scc1 {done}")
    A("s_sleep 2")
    A(f"s_branch {lp}")
    A.label(done)

def poll_tagged(issue, tags, vt, scnt=39):
    lp = L("pt"); done = L("ptd")
    A(f"s_mov_b32 s{scnt}, 0")
    A.label(lp)
    issue()
    A("s_waitcnt vmcnt(0)")
    A(f"v_xor_b32 v{vt}, s70, v{tags[0]}")
    for t in tags[1:]:
        A(f"v_xor_b32 v{vt+1}, s70, v{t}")
        A(f"v_or_b32 v{vt}, v{vt}, v{vt+1}")
    A(f"v_cmp_ne_u32 vcc, 0, v{vt}")
    A(f"s_cbranch_vccz {done}")
    A(f"s_add_u32 s{scnt}, s{scnt}, 1")
    A(f"s_cmp_gt_u32 s{scnt}, {SPIN_LIMIT}")
    A(f"s_cbranch_scc1 {done}")
    A("s_sleep 2")
    A(f"s_branch {lp}")
    A.label(done)

def gemv_fma8(vw, npass, vacc, vx, vt, stride=4):
    for p in range(npass):
        for i in range(4):
            w = vw + stride*p + i
            A(f"v_lshlrev_b32 v{vt}, 16, v{w}")
            A(f"v_and_b32 v{vt+1}, 0xffff0000, v{w}")
            if p == 0:
                A(f"v_mul_f32 v{vacc+2*i}, v{vx+p}, v{vt}")
                A(f"v_mul_f32 v{vacc+2*i+1}, v{vx+p}, v{vt+1}")
            else:
                A(f"v_fmac_f32 v{vacc+2*i}, v{vx+p}, v{vt}")
                A(f"v_fmac_f32 v{vacc+2*i+1}, v{vx+p}, v{vt+1}")

def reduce8(a):
    A("s_nop 1")
    for i in range(4):
        A(f"v_permlane32_swap_b32 v{a+i}, v{a+4+i}")
    for i in range(4):
        A(f"v_add_f32 v{a+i}, v{a+i}, v{a+4+i}")
    A("s_nop 1")
    for i in range(2):
        A(f"v_permlane16_swap_b32 v{a+i}, v{a+2+i}")
    for i in range(2):
        A(f"v_add_f32 v{a+i}, v{a+i}, v{a+2+i}")
    row_reduce([a, a+1], "v_add_f32")

def exec_rows():
    A("s_mov_b32 exec_lo, 0x00010001")
    A("s_mov_b32 exec_hi, 0x00010001")
def exec_all():
    A("s_mov_b64 exec, -1")

kernel_header(A, NAME)
A("s_cmp_ge_u32 s2, 256")
A("s_cbranch_scc1 .Lend")
A("s_load_dwordx8 s[72:79], s[0:1], 0")
A("s_load_dwordx8 s[80:87], s[0:1], 32")
A("s_load_dwordx8 s[88:95], s[0:1], 64")
A("s_load_dwordx4 s[96:99], s[0:1], 96")
A("v_lshrrev_b32 v1, 6, v0")
A("s_nop 0")
A("v_readfirstlane_b32 s20, v1")
A("v_and_b32 v1, 63, v0")
A("s_lshr_b32 s25, s2, 4")
A("s_and_b32 s26, s2, 15")
if PREF:
    A("s_getpc_b64 s[28:29]")
    A("s_and_b32 s28, s28, 0xffffff00")
    A("v_lshlrev_b32 v2, 4, v0")
    for i in range(PREF):
        A(f"v_min_u32 v3, .Lend-{NAME}-12, v2")
        A(f"global_load_dwordx4 v[252:255], v3, s[28:29]")
        A("v_add_u32 v2, 0x2000, v2")
A("s_waitcnt lgkmcnt(0)")
def mk_srd(d, p, n):
    A(f"s_mov_b32 s{d}, s{p}"); A(f"s_mov_b32 s{d+1}, s{p+1}")
    A(f"s_mov_b32 s{d+2}, {n}"); A(f"s_mov_b32 s{d+3}, 0x00020000")
mk_srd(8, 98, WS_SIZE)
mk_srd(12, 96, 256)
A("s_mov_b32 s16, s74"); A("s_mov_b32 s17, s75")
A("s_mov_b32 s18, s76"); A("s_mov_b32 s19, s77")
A("s_cmp_lt_u32 s20, 4")
A("s_cbranch_scc1 .Lstream")
A.label(".Laux")
A("s_setprio 3")
A("s_sub_u32 s27, s20, 4")
A("v_mov_b32 v52, 0")
A("v_lshlrev_b32 v2, 1, v1")
A("v_lshlrev_b32 v3, 2, v1")
SYNC = LDS_MISC + 1024
A("s_cmp_lg_u32 s27, 0")
A("s_cbranch_scc1 .Lnosync")
A(f"v_mov_b32 v8, {SYNC}")
A("v_mov_b32 v10, 0"); A("v_mov_b32 v11, 0")
A("ds_write_b64 v8, v[10:11]")
A("ds_write_b64 v8, v[10:11] offset:8")
A("ds_write_b64 v8, v[10:11] offset:16")
A("ds_write_b64 v8, v[10:11] offset:24")
A(f"v_mov_b32 v8, {QFLAG}")
A("ds_write_b64 v8, v[10:11]")
A("s_waitcnt lgkmcnt(0)")
A.label(".Lnosync")
A("s_barrier")
A("s_cmp_lg_u32 s2, 0")
A("s_cbranch_scc1 .Lnononce")
A("s_cmp_lg_u32 s27, 0")
A("s_cbranch_scc1 .Lnononce")
A("s_memrealtime s[70:71]")
A("s_waitcnt lgkmcnt(0)")
A("s_or_b32 s70, s70, 1")
A("v_mov_b32 v9, s70")
A("s_mov_b64 exec, 1")
A("buffer_store_dword v9, v52, s[12:15], 0 offen sc0 sc1")
exec_all()
A.label(".Lnononce")
stamp(0)
mk_srd(44, 72, 1280)
mk_srd(48, 90, 1280)
mk_srd(52, 92, 640*3840*2)
mk_srd(56, 78, 640*6144*2)
A("v_lshrrev_b32 v4, 2, v1")
A("v_and_b32 v5, 3, v1")
A("s_mul_i32 s28, s27, 160")
A("v_add_u32 v6, s28, v4")
A("v_lshlrev_b32 v7, 1, v6")
A("v_lshlrev_b32 v14, 2, v6")
A("s_cmp_lg_u32 s27, 0")
A("s_cbranch_scc1 .Lnoclear")
A("v_mov_b32 v9, -1")
A("s_mov_b64 exec, 0xffffffff")
A("s_cmp_ge_u32 s2, 120")
A("s_cbranch_scc1 .Lclr1")
A("s_lshl_b32 s28, s2, 7")
A(f"buffer_store_dword v9, v3, s[8:11], s28 offen offset:{WS_MOD} sc0 sc1")
A.label(".Lclr1")
A.label(".Lclr2")
A("s_mov_b64 exec, 0xff")
A("s_lshl_b32 s28, s25, 10")
A("s_lshl_b32 s29, s26, 5")
A("s_add_u32 s28, s28, s29")
A(f"s_add_u32 s28, s28, {WS_ML}")
A(f"buffer_store_dword v9, v3, s[8:11], s28 offen sc0 sc1")
A(f"buffer_store_dword v9, v3, s[8:11], s28 offen offset:512 sc0 sc1")
exec_all()
A("s_mul_i32 s28, s2, 1536")
A(f"s_add_u32 s28, s28, {WS_OP}")
A("v_lshlrev_b32 v8, 4, v1")
A("v_mov_b32 v10, -1"); A("v_mov_b32 v11, -1"); A("v_mov_b32 v12, -1"); A("v_mov_b32 v13, -1")
A(f"buffer_store_dwordx4 v[10:13], v8, s[8:11], s28 offen sc0 sc1")
A("s_mov_b64 exec, 0xffffffff")
A(f"buffer_store_dwordx4 v[10:13], v8, s[8:11], s28 offen offset:1024 sc0 sc1")
exec_all()
A("s_cmp_ge_u32 s2, 160")
A("s_cbranch_scc1 .Lclr3")
A("s_lshl_b32 s28, s2, 8")
A(f"s_add_u32 s28, s28, {WS_AP}")
A(f"buffer_store_dword v9, v3, s[8:11], s28 offen sc0 sc1")
A("s_branch .Lclr4")
A.label(".Lclr3")
A("s_sub_u32 s28, s2, 160")
A("s_cmp_ge_u32 s28, 48")
A("s_cbranch_scc1 .Lclr4")
A("s_mov_b64 exec, 0xffffffff")
A("s_lshl_b32 s28, s28, 7")
A(f"s_add_u32 s28, s28, {WS_ACT}")
A(f"buffer_store_dword v9, v3, s[8:11], s28 offen sc0 sc1")
exec_all()
A.label(".Lclr4")
A("buffer_load_dword v62, v52, s[12:15], 0 offen sc1")
A.label(".Lnoclear")
A("s_cmp_ge_u32 s2, 64")
A("s_cbranch_scc1 .Lld_q")
for p in range(10):
    A(f"buffer_load_ushort v{16+p}, v7, s[48:51], 0 offen offset:{32*p}")
A("v_mul_u32_u24 v8, 7680, v6")
A("v_lshl_add_u32 v8, v5, 4, v8")
A("s_lshl_b32 s28, s2, 6")
for p in range(10):
    A(f"buffer_load_dwordx4 v[{64+4*p}:{67+4*p}], v8, s[52:55], s28 offen")
    A(f"s_add_u32 s28, s28, {16*7680}")
A("s_branch .Lld_done20")
A.label(".Lld_q")
for p in range(10):
    A(f"buffer_load_ushort v{16+p}, v7, s[44:47], 0 offen offset:{32*p}")
for p in range(10):
    A(f"buffer_load_ushort v{28+p}, v2, s[44:47], 0 offen offset:{128*p}")
A("v_mul_u32_u24 v8, 12288, v6")
A("v_lshl_add_u32 v8, v5, 4, v8")
A("s_sub_u32 s28, s2, 64")
A("s_lshl_b32 s28, s28, 6")
for p in range(10):
    A(f"buffer_load_dwordx4 v[{104+4*p}:{107+4*p}], v8, s[56:59], s28 offen")
    A(f"s_add_u32 s28, s28, {16*12288}")
A.label(".Lld_done")
A("s_waitcnt vmcnt(30)")
A.label(".Lld_done20")
A("s_waitcnt vmcnt(20)")
stamp(1)
A("s_cmp_lg_u32 s27, 0")
A("s_cbranch_scc1 .Lnoatom")
A("v_mov_b32 v9, 1")
A("s_mov_b64 exec, 1")
A("buffer_atomic_add v9, v52, s[12:15], 0 offen offset:128 sc1")
exec_all()
A("v_readfirstlane_b32 s70, v62")
A("s_nop 0")
A("s_cmp_lg_u32 s70, 0")
A("s_cbranch_scc1 .Lnoatom")
get_nonce(52, 9)
A.label(".Lnoatom")
stamp(2)


def reduce8_rg4(a):
    A("s_nop 1")
    for i in range(4):
        A(f"v_permlane32_swap_b32 v{a+i}, v{a+4+i}")
    for i in range(4):
        A(f"v_add_f32 v{a+i}, v{a+i}, v{a+4+i}")
    A("s_nop 1")
    for i in range(2):
        A(f"v_permlane16_swap_b32 v{a+i}, v{a+2+i}")
    for i in range(2):
        A(f"v_add_f32 v{a+i}, v{a+i}, v{a+2+i}")
    for ctl in ("row_ror:4", "row_ror:8"):
        A("s_nop 1")
        for i in range(2):
            A(f"v_add_f32_dpp v{a+i}, v{a+i}, v{a+i} {ctl} row_mask:0xf bank_mask:0xf")

def reduce8_rg8(a):
    A("s_nop 1")
    for i in range(4):
        A(f"v_permlane32_swap_b32 v{a+i}, v{a+4+i}")
    for i in range(4):
        A(f"v_add_f32 v{a+i}, v{a+i}, v{a+4+i}")
    A("s_nop 1")
    for i in range(2):
        A(f"v_permlane16_swap_b32 v{a+i}, v{a+2+i}")
    for i in range(2):
        A(f"v_add_f32 v{a+i}, v{a+i}, v{a+2+i}")
    A("s_nop 1")
    for i in range(2):
        A(f"v_add_f32_dpp v{a+i}, v{a+i}, v{a+i} row_ror:8 row_mask:0xf bank_mask:0xf")

def reduce8_rg2(a):
    A("s_nop 1")
    for i in range(4):
        A(f"v_permlane32_swap_b32 v{a+i}, v{a+4+i}")
    for i in range(4):
        A(f"v_add_f32 v{a+i}, v{a+i}, v{a+4+i}")
    A("s_nop 1")
    for i in range(2):
        A(f"v_permlane16_swap_b32 v{a+i}, v{a+2+i}")
    for i in range(2):
        A(f"v_add_f32 v{a+i}, v{a+i}, v{a+2+i}")
    for ctl in ("row_ror:2", "row_ror:4", "row_ror:8"):
        A("s_nop 1")
        for i in range(2):
            A(f"v_add_f32_dpp v{a+i}, v{a+i}, v{a+i} {ctl} row_mask:0xf bank_mask:0xf")

def part_addr(vdst, ncl_log, vt, base):
    A(f"v_lshrrev_b32 v{vt}, 4, v1")
    A(f"v_and_b32 v{vdst}, 1, v{vt}")
    A(f"v_lshrrev_b32 v{vt}, 1, v{vt}")
    A(f"v_lshlrev_b32 v{vdst}, 3, v{vdst}")
    A(f"v_lshl_add_u32 v{vdst}, v{vt}, 4, v{vdst}")
    A(f"v_and_b32 v{vt}, {(1<<ncl_log)-1}, v1")
    A(f"v_lshl_add_u32 v{vdst}, v{vt}, 5, v{vdst}")
    A(f"s_mul_i32 s28, s27, {(8<<ncl_log)*4}")
    A(f"s_add_u32 s28, s28, {base}")
    A(f"v_add_u32 v{vdst}, s28, v{vdst}")

def exec_low(ncl_log):
    m16 = (1 << (1 << ncl_log)) - 1
    m32 = m16 | (m16 << 16)
    A(f"s_mov_b32 exec_lo, {m32:#x}")
    A(f"s_mov_b32 exec_hi, {m32:#x}")

PRO_RED = LDS_MISC

def silu_c():
    for p in range(10):
        A(f"v_lshlrev_b32 v{16+p}, 16, v{16+p}")
        silu(16+p, 8)
        bf16r(16+p, 8)

def job_partial(vw, red):
    gemv_fma8(vw, 10, 40, 16, 8)
    reduce8_rg4(40)
    part_addr(8, 2, 9, red)
    exec_low(2)
    A("ds_write_b64 v8, v[40:41]")
    exec_all()
    A("s_waitcnt lgkmcnt(0)")

def aux_arrive(ph):
    A(f"v_mov_b32 v8, {SYNC + 4*ph}")
    A("v_mov_b32 v9, 1")
    A("s_mov_b64 exec, 1")
    A("ds_add_u32 v8, v9")
    exec_all()

def aux_wait(ph):
    lp = L("aw")
    A(f"v_mov_b32 v8, {SYNC + 4*ph}")
    A.label(lp)
    A("ds_read_b32 v9, v8")
    A("s_waitcnt lgkmcnt(0)")
    A("v_readfirstlane_b32 s28, v9")
    A("s_nop 0")
    A("s_cmp_lt_u32 s28, 4")
    A(f"s_cbranch_scc1 {lp}")

def job_final(red, dst):
    A(f"v_add_u32 v8, {red}, v3")
    for w in range(4):
        A(f"ds_read_b32 v{44+w}, v8 offset:{128*w}")
    A("s_waitcnt lgkmcnt(0)")
    A("v_add_f32 v44, v44, v45")
    A("v_add_f32 v46, v46, v47")
    A("v_add_f32 v44, v44, v46")

A("s_cmp_ge_u32 s2, 64")
A("s_cbranch_scc1 .Lp1_q")
A("s_waitcnt vmcnt(10)")
stamp(16)
silu_c()
stamp(17)
A("s_waitcnt vmcnt(0)")
A(f"v_mov_b32 v8, {SYNC + 12}")
A("v_mov_b32 v9, 1")
A("s_mov_b64 exec, 1")
A("ds_add_u32 v8, v9")
exec_all()
stamp(18)
job_partial(64, PRO_RED)
stamp(19)
aux_arrive(0)
A("s_cmp_lg_u32 s27, 0")
A("s_cbranch_scc1 .Lp1_done")
aux_wait(0)
stamp(20)
job_final(PRO_RED, None)
bf16r(44, 8)
A("s_mov_b64 exec, 0xffffffff")
A("s_cmp_ge_u32 s2, 40")
A("s_cbranch_scc1 .Lp1_nc")
A("v_mov_b32 v45, s70")
A("v_lshlrev_b32 v8, 3, v1")
A("s_lshl_b32 s28, s2, 8")
A(f"s_add_u32 s28, s28, {WS_MODT}")
A(f"buffer_store_dwordx2 v[44:45], v8, s[8:11], s28 offen sc0 sc1")
exec_all()
A("s_branch .Lp1_done")
A.label(".Lp1_nc")
desentinel(44, 8)
A("s_lshl_b32 s28, s2, 7")
A(f"buffer_store_dword v44, v3, s[8:11], s28 offen offset:{WS_MOD} sc0 sc1")
exec_all()
A("s_branch .Lp1_done")
A.label(".Lp1_q")
A("s_waitcnt vmcnt(10)")
for p in range(10):
    A(f"v_lshlrev_b32 v{28+p}, 16, v{28+p}")
    A(f"v_lshlrev_b32 v{16+p}, 16, v{16+p}")
A("v_add_f32 v8, v28, v29")
for p in range(2, 10):
    A(f"v_add_f32 v8, v8, v{28+p}")
wave_reduce(8, "v_add_f32")
A("v_mul_f32 v8, 0x3acccccd, v8")
A("v_sub_f32 v10, v28, v8")
A("v_mul_f32 v9, v10, v10")
for p in range(1, 10):
    A(f"v_sub_f32 v10, v{28+p}, v8")
    A("v_fma_f32 v9, v10, v10, v9")
wave_reduce(9, "v_add_f32")
A("v_mul_f32 v9, 0x3acccccd, v9")
bf16r(8, 10); bf16r(9, 10)
A("v_add_f32 v9, 0x3727c5ac, v9")
bf16r(9, 10)
A("v_sqrt_f32 v9, v9")
A("s_nop 0")
bf16r(9, 10)
for p in range(10):
    d = 16 + p
    A(f"v_sub_f32 v{d}, v{d}, v8")
    bf16r(d, 10)
    A(f"v_mov_b32 v11, v9")
    fdiv(d, d, 11, 12, 13)
    bf16r(d, 10)
A.label(".Lp1_done")
stamp(3)
A("s_cmp_ge_u32 s2, 64")
A("s_cbranch_scc1 .Lp2_q")
A.label(".Lp2_none")
A("s_branch .Lp2_done")
A.label(".Lp2_q")
A(f"v_mov_b32 v12, {MFLAG}")
A("s_cmp_lg_u32 s27, 0")
A("s_cbranch_scc1 .Lm_wait")
stamp(4)
A("v_lshlrev_b32 v13, 4, v1")
A(f"s_mov_b32 s29, {WS_MODT}")
def iss():
    for i in range(10):
        A(f"buffer_load_dwordx4 v[{144+4*i}:{147+4*i}], v13, s[8:11], s29 offen offset:{1024*i} sc1" if i < 4 else f"buffer_load_dwordx4 v[{144+4*i}:{147+4*i}], v13, s[8:11], 0 offen offset:{WS_MODT + 1024*i} sc1")
poll_tagged(iss, [145 + 2*j for j in range(20)], 53)
A("v_lshlrev_b32 v13, 3, v1")
A(f"v_add_u32 v13, {MODL}, v13")
for i in range(10):
    A(f"v_mov_b32 v{145+4*i}, v{146+4*i}")
    A(f"ds_write_b64 v13, v[{144+4*i}:{145+4*i}] offset:{512*i}")
A("s_waitcnt lgkmcnt(0)")
A("v_mov_b32 v13, 1")
A("ds_write_b32 v12, v13")
A.label(".Lm_wait")
A("ds_read_b32 v13, v12")
A("s_waitcnt lgkmcnt(0)")
A("v_readfirstlane_b32 s28, v13")
A("s_nop 0")
A("s_cmp_eq_u32 s28, 1")
A("s_cbranch_scc1 .Lm_ok")
A("s_sleep 1")
A("s_branch .Lm_wait")
A.label(".Lm_ok")
stamp(5)
A(f"v_add_u32 v13, {MODL}, v14")
for p in range(10):
    A(f"ds_read_b32 v{144+p}, v13 offset:{64*p}")
    A(f"ds_read_b32 v{154+p}, v13 offset:{2560 + 64*p}")
A("s_waitcnt vmcnt(0) lgkmcnt(0)")
for p in range(10):
    d = 16 + p
    A(f"v_add_f32 v{154+p}, 1.0, v{154+p}")
    bf16r(154+p, 10)
    A(f"v_mul_f32 v{d}, v{d}, v{154+p}")
    bf16r(d, 10)
    A(f"v_add_f32 v{d}, v{d}, v{144+p}")
    bf16r(d, 10)
job_partial(104, PRO_RED + 512)
aux_arrive(1)
A("s_cmp_lg_u32 s27, 0")
A("s_cbranch_scc1 .Lp2_done")
aux_wait(1)
job_final(PRO_RED + 512, None)
A("s_nop 1")
A("v_mov_b32_dpp v45, v44 quad_perm:[1,0,3,2] row_mask:0xf bank_mask:0xf")
A("v_cvt_pk_bf16_f32 v44, v44, v45")
A("v_mov_b32 v45, s70")
A("s_sub_u32 s28, s2, 64")
A("s_lshl_b32 s28, s28, 7")
A(f"s_add_u32 s28, s28, {WS_QT}")
A("s_mov_b32 exec_lo, 0x55555555")
A("s_mov_b32 exec_hi, 0")
A("buffer_store_dwordx2 v[44:45], v3, s[8:11], s28 offen sc0 sc1")
exec_all()
A.label(".Lp2_done")
A("s_setprio 0")
A("s_sub_u32 s28, s2, 64")
A("s_cmp_ge_u32 s28, 56")
A("s_cbranch_scc1 .Lp3_done")
for p in range(10):
    A(f"buffer_load_ushort v{16+p}, v7, s[48:51], 0 offen offset:{32*p}")
A("v_mul_u32_u24 v8, 7680, v6")
A("v_lshl_add_u32 v8, v5, 4, v8")
A("s_lshl_b32 s28, s2, 6")
for p in range(10):
    A(f"buffer_load_dwordx4 v[{64+4*p}:{67+4*p}], v8, s[52:55], s28 offen")
    A(f"s_add_u32 s28, s28, {16*7680}")
A("s_waitcnt vmcnt(10)")
silu_c()
A("s_waitcnt vmcnt(0)")
job_partial(64, PRO_RED)
aux_arrive(2)
A("s_cmp_lg_u32 s27, 0")
A("s_cbranch_scc1 .Lp3_done")
aux_wait(2)
job_final(PRO_RED, None)
bf16r(44, 8)
desentinel(44, 8)
A("s_lshl_b32 s28, s2, 7")
A("s_mov_b64 exec, 0xffffffff")
A(f"buffer_store_dword v44, v3, s[8:11], s28 offen offset:{WS_MOD} sc0 sc1")
exec_all()
A.label(".Lp3_done")
A("s_setprio 0")
stamp(6)
A("s_cmp_ge_u32 s2, 160")
A("s_cbranch_scc1 .Lpre_t3")
mk_srd(60, 80, 6144*640*2)
A("s_mul_hi_u32 s30, s2, 0x1999999a")
A("s_mul_i32 s31, s30, 10")
A("s_sub_u32 s31, s2, s31")
A("s_mul_i32 s28, s30, 491520")
A("s_lshl_b32 s31, s31, 7")
A("s_add_u32 s28, s28, s31")
A(f"s_mul_i32 s31, s27, {96*1280}")
A("s_add_u32 s28, s28, s31")
A("v_lshrrev_b32 v8, 3, v1")
A("v_mul_u32_u24 v8, 1280, v8")
A("v_and_b32 v9, 7, v1")
A("v_lshl_add_u32 v8, v9, 4, v8")
for p in range(12):
    A(f"buffer_load_dwordx4 v[{64+4*p}:{67+4*p}], v8, s[60:63], s28 offen")
    A(f"s_add_u32 s28, s28, {8*1280}")
A("s_branch .Laux_wait")
A.label(".Lpre_t3")
A("s_cmp_ge_u32 s2, 208")
A("s_cbranch_scc1 .Lpre_t4")
mk_srd(60, 84, 640*1536*2)
mk_srd(64, 86, 640*1536*2)
A("s_sub_u32 s28, s2, 160")
A("s_lshl_b32 s28, s28, 6")
A("v_mul_u32_u24 v8, 3072, v6")
A("v_lshl_add_u32 v8, v5, 4, v8")
for p in range(10):
    A(f"buffer_load_dwordx4 v[{64+4*p}:{67+4*p}], v8, s[60:63], s28 offen")
    A(f"buffer_load_dwordx4 v[{104+4*p}:{107+4*p}], v8, s[64:67], s28 offen")
    A(f"s_add_u32 s28, s28, {16*3072}")
A("s_branch .Laux_wait")
A.label(".Lpre_t4")
A("s_cmp_ge_u32 s2, 248")
A("s_cbranch_scc1 .Laux_wait")
mk_srd(60, 88, 1536*640*2)
A("s_sub_u32 s28, s2, 208")
A("s_lshl_b32 s28, s28, 5")
A("s_mul_i32 s31, s27, 491520")
A("s_add_u32 s28, s28, s31")
A("v_lshrrev_b32 v8, 1, v1")
A("v_mul_u32_u24 v8, 1280, v8")
A("v_and_b32 v9, 1, v1")
A("v_lshl_add_u32 v8, v9, 4, v8")
for p in range(12):
    A(f"buffer_load_dwordx4 v[{64+4*p}:{67+4*p}], v8, s[60:63], s28 offen")
    A(f"s_add_u32 s28, s28, {32*1280}")
A.label(".Laux_wait")
poll_counter(128, 256, 52, 53)
if POOL:
    A("s_cmp_lg_u32 s27, 0")
    A("s_cbranch_scc1 .Lfeed_done")
    A("s_and_b32 s54, s25, 3")
    A("s_lshl_b32 s54, s54, 6")
    A("s_lshr_b32 s55, s25, 2")
    A("s_lshl_b32 s55, s55, 2")
    A("s_add_u32 s54, s54, s55")
    A("s_add_u32 s54, s54, 16")
    A(f"v_mov_b32 v8, {PQ}")
    A("s_mov_b32 s44, 0")
    A("s_mov_b32 s47, 0")
    A("s_mov_b32 s48, 0")
    A.label(".Lfeed")
    A("ds_read_b32 v9, v8")
    A("s_waitcnt lgkmcnt(0)")
    A("v_readfirstlane_b32 s45, v9")
    A("s_nop 0")
    A(f"s_add_u32 s45, s45, {BATCH}")
    A("s_cmp_le_u32 s45, s44")
    A("s_cbranch_scc0 .Lfeed_get")
    A("s_sleep 4")
    A("s_branch .Lfeed")
    A.label(".Lfeed_get")
    A("s_sub_u32 s49, s44, s47")
    A(f"s_cmp_ge_u32 s49, {4*(CAP-S_STATIC) - BATCH}")
    A("s_cbranch_scc1 .Lfeed_fin")
    A(f"v_mov_b32 v10, {BATCH}")
    A("s_mov_b64 exec, 1")
    A("buffer_atomic_add v10, v52, s[12:15], s54 offen sc0")
    exec_all()
    A("s_waitcnt vmcnt(0)")
    A("v_readfirstlane_b32 s46, v10")
    A("s_nop 0")
    A(f"s_cmp_ge_u32 s46, {2*POOL}")
    A("s_cbranch_scc1 .Lfeed_fin")
    A(f"s_cmp_ge_u32 s46, {POOL}")
    A("s_cselect_b32 s49, 1, 0")
    A("s_cmp_eq_u32 s49, s48")
    A("s_cbranch_scc1 .Lfeed_same")
    A("s_mov_b32 s48, s49")
    A("s_mov_b32 s47, s44")
    A.label(".Lfeed_same")
    A("v_add_u32 v10, s46, v1")
    A("v_add_u32 v11, s44, v1")
    A("v_and_b32 v11, 31, v11")
    A("v_lshlrev_b32 v11, 2, v11")
    A(f"v_add_u32 v11, {PQE}, v11")
    A(f"s_mov_b64 exec, {(1<<BATCH)-1}")
    A("ds_write_b32 v11, v10")
    exec_all()
    A("s_waitcnt lgkmcnt(0)")
    A(f"s_add_u32 s44, s44, {BATCH}")
    A("v_mov_b32 v10, s44")
    A("ds_write_b32 v8, v10 offset:4")
    A("s_branch .Lfeed")
    A.label(".Lfeed_fin")
    A("v_mov_b32 v10, 1")
    A("ds_write_b32 v8, v10 offset:8")
    A.label(".Lfeed_done")
A("s_waitcnt vmcnt(0) lgkmcnt(0)")
A("s_branch .Ltail")

A.label(".Lstream")
A("s_barrier")
mk_srd(4, 74, KV_BYTES)
stamp(0)
A("s_lshl_b32 s27, s26, 2")
A("s_add_u32 s27, s27, s20")
A(f"s_mul_i32 s24, s25, {2*HEADB}")
A(f"s_mul_i32 s23, s20, {RING}")
A("s_mov_b32 s22, 0")
A("s_mov_b32 s21, 0")
A("s_mov_b32 s67, 0")
A(f"s_mov_b32 s68, {6-int(os.environ.get('LOOK','6'))}")
A(f"s_mul_i32 s32, s20, {SCW}")
A(f"s_add_u32 s32, s32, {LDS_SC}")
A("s_and_b32 s54, s25, 3")
A("s_lshl_b32 s54, s54, 6")
A("s_lshr_b32 s55, s25, 2")
A("s_lshl_b32 s55, s55, 2")
A("s_add_u32 s54, s54, s55")
A("s_add_u32 s54, s54, 16")
A("s_mov_b32 s44, 0")
A("s_mov_b32 s45, 0")
A("s_mov_b32 s46, -2")
A("s_mov_b32 s47, 0")
A("s_mov_b32 s48, 0")
A("v_mov_b32 v52, 0")
A("v_mov_b32 v63, 0")
for i in range(3):
    A(f"v_add_u32 v{2+i}, {64*i}, v1")
    A(f"v_mul_u32_u24 v{2+i}, 2731, v{2+i}")
    A(f"v_lshrrev_b32 v{2+i}, 16, v{2+i}")
    A(f"v_and_b32 v{2+i}, 6, v{2+i}")
    A(f"v_lshlrev_b32 v{2+i}, 4, v{2+i}")
    A(f"v_lshlrev_b32 v5, 4, v1")
    A(f"v_xor_b32 v{2+i}, v{2+i}, v5")

def issue_tile(sd, so, tile):
    A(f"s_cmp_lt_u32 s{sd}, 1024")
    A("s_cselect_b32 s4, s16, s18")
    A("s_cselect_b32 s5, s17, s19")
    A(f"s_add_u32 s29, s{so}, {6144*tile}")
    A("s_add_u32 m0, s23, s22")
    A("s_add_u32 s30, s29, 3072")
    for i in range(3):
        A(f"buffer_load_dwordx4 v{2+i}, s[4:7], s29 offen offset:{1024*i} nt lds")
    A("s_add_u32 m0, m0, 3072")
    A("s_nop 0")
    for i in range(3):
        A(f"buffer_load_dwordx4 v{2+i}, s[4:7], s30 offen offset:{1024*i} nt lds")
    A("s_add_u32 s22, s22, 6144")
    A(f"s_cmp_eq_u32 s22, {RING}")
    A("s_cselect_b32 s22, 0, s22")

def take_ticket(t):
    A(f"v_mov_b32 v62, {PQ}")
    A("v_mov_b32 v59, 1")
    A("s_mov_b64 exec, 1")
    A("ds_add_rtn_u32 v59, v62, v59")
    exec_all()
    A("s_waitcnt lgkmcnt(0)")
    A("v_readfirstlane_b32 s31, v59")
    A.label(f".Lt_spin{t}")
    A("ds_read_b64 v[58:59], v62 offset:4")
    A("s_waitcnt lgkmcnt(0)")
    A("v_readfirstlane_b32 s28, v58")
    A("v_readfirstlane_b32 s29, v59")
    A("s_nop 0")
    A("s_cmp_lt_u32 s31, s28")
    A(f"s_cbranch_scc1 .Lt_ok{t}")
    A("s_cmp_lg_u32 s29, 0")
    A(f"s_cbranch_scc1 .Lt_none{t}")
    A("s_sleep 1")
    A(f"s_branch .Lt_spin{t}")
    A.label(f".Lt_none{t}")
    A("s_mov_b32 s46, 0x7fffffff")
    A(f"s_branch .Lt_done{t}")
    A.label(f".Lt_ok{t}")
    A("s_and_b32 s31, s31, 31")
    A("s_lshl_b32 s31, s31, 2")
    A(f"s_add_u32 s31, s31, {PQE}")
    A("v_mov_b32 v59, s31")
    A("ds_read_b32 v59, v59")
    A("s_waitcnt lgkmcnt(0)")
    A("v_readfirstlane_b32 s46, v59")
    A("s_nop 0")
    A.label(f".Lt_done{t}")

GEN = [0]
def gen_next(sd, so):
    GEN[0] += 1; t = GEN[0]
    A.label(f".Lg_top{t}")
    A("s_cmp_ge_u32 s44, 2")
    A(f"s_cbranch_scc1 .Lg_v{t}")
    A(f"s_cmp_lt_u32 s45, {S_STATIC}")
    A(f"s_cbranch_scc1 .Lg_static{t}")
    if POOL:
        A("s_cmp_eq_u32 s44, 0")
        A("s_cselect_b32 s29, s47, s48")
        A(f"s_cmp_ge_u32 s29, {CAP}")
        A(f"s_cbranch_scc1 .Lg_next{t}")
        A("s_cmp_lg_u32 s46, -2")
        A(f"s_cbranch_scc1 .Lg_have{t}")
        take_ticket(t)
        A.label(f".Lg_have{t}")
        A(f"s_mul_i32 s28, s44, {POOL}")
        A("s_sub_u32 s28, s46, s28")
        A(f"s_cmp_ge_u32 s28, {POOL}")
        A(f"s_cbranch_scc1 .Lg_next{t}")
        A(f"s_add_u32 s28, s28, {64*S_STATIC}")
        A("s_mov_b32 s46, -2")
        A(f"s_branch .Lg_rec{t}")
    A.label(f".Lg_next{t}")
    A("s_add_u32 s44, s44, 1")
    A("s_mov_b32 s45, 0")
    A(f"s_branch .Lg_top{t}")
    A.label(f".Lg_static{t}")
    A(f"s_mul_i32 s28, s27, {S_STATIC}")
    A("s_add_u32 s28, s28, s45")
    A("s_add_u32 s45, s45, 1")
    A.label(f".Lg_rec{t}")
    A("s_cmp_eq_u32 s44, 0")
    A("s_cselect_b32 s29, s47, s48")
    A("s_lshl_b32 s30, s44, 4")
    A("s_add_u32 s30, s30, s29")
    A("s_add_u32 s29, s29, 1")
    A("s_cmp_eq_u32 s44, 0")
    A("s_cselect_b32 s47, s29, s47")
    A("s_cselect_b32 s48, s48, s29")
    A("s_mov_b32 m0, s30")
    A("s_nop 0")
    A("v_writelane_b32 v63, s28, m0")
    A(f"s_branch .Lg_emit{t}")
    A.label(f".Lg_v{t}")
    A("s_cmp_ge_u32 s44, 4")
    A(f"s_cbranch_scc1 .Lg_end{t}")
    A("s_cmp_eq_u32 s44, 2")
    A("s_cselect_b32 s29, s47, s48")
    A("s_cmp_lt_u32 s45, s29")
    A(f"s_cbranch_scc1 .Lg_rep{t}")
    A("s_add_u32 s44, s44, 1")
    A("s_mov_b32 s45, 0")
    A(f"s_branch .Lg_v{t}")
    A.label(f".Lg_rep{t}")
    A("s_sub_u32 s30, s44, 2")
    A("s_lshl_b32 s30, s30, 4")
    A("s_add_u32 s30, s30, s45")
    A("s_add_u32 s45, s45, 1")
    A("s_nop 1")
    A("v_readlane_b32 s28, v63, s30")
    A.label(f".Lg_emit{t}")
    A(f"s_lshl_b32 s29, s44, 9")
    A(f"s_or_b32 s{sd}, s29, s28")
    A("s_and_b32 s29, s44, 1")
    A(f"s_mul_i32 s29, s29, {HEADB}")
    A("s_mul_i32 s28, s28, 24576")
    A("s_add_u32 s28, s28, s29")
    A(f"s_add_u32 s{so}, s28, s24")
    A(f"s_branch .Lg_out{t}")
    A.label(f".Lg_end{t}")
    A(f"s_mov_b32 s{sd}, -1")
    A(f"s_mov_b32 s{so}, 0x80000000")
    A.label(f".Lg_out{t}")

def do_fill():
    gen_next(60, 63)
    gen_next(61, 64)
    for t in range(6):
        if t >= FILLW:
            A(f"s_waitcnt vmcnt({6*(FILLW-1)})")
        if t < 4: issue_tile(60, 63, t)
        else: issue_tile(61, 64, t-4)
    stamp(9)
A("s_cmp_ge_u32 s2, 40")
A("s_cbranch_scc1 .Lnogate")
A(f"v_mov_b32 v53, {LDS_MISC + 1024 + 12}")
A.label(".Lgate")
A("ds_read_b32 v54, v53")
A("s_waitcnt lgkmcnt(0)")
A("v_readfirstlane_b32 s28, v54")
A("s_nop 0")
A("s_cmp_ge_u32 s28, 4")
A("s_cbranch_scc1 .Lnogate")
A("s_sleep 1")
A("s_branch .Lgate")
A.label(".Lnogate")
do_fill()
A("v_lshrrev_b32 v6, 4, v1")
A("v_and_b32 v7, 15, v1")
A("v_lshlrev_b32 v8, 4, v6")
A("v_and_b32 v9, 6, v7")
A("v_xor_b32 v10, v6, v9")
A("v_xor_b32 v11, 4, v10")
A("v_mul_u32_u24 v12, 384, v7")
A("v_add_u32 v12, s23, v12")
A("v_lshl_add_u32 v10, v10, 4, v12")
A("v_lshl_add_u32 v11, v11, 4, v12")
A("v_bfe_u32 v40, v1, 2, 2")
A("v_and_b32 v41, 3, v1")
A("v_and_b32 v42, 1, v6")
A("v_lshlrev_b32 v42, 1, v42")
A("v_lshrrev_b32 v43, 1, v40")
A("v_or_b32 v42, v42, v43")
A("v_lshl_add_u32 v43, v6, 2, v40")
A("v_mul_u32_u24 v43, 384, v43")
A("v_lshl_add_u32 v43, v41, 3, v43")
A("v_add_u32 v43, s23, v43")
for bb in range(4):
    A(f"v_xor_b32 v44, {bb}, v42")
    A(f"v_lshl_add_u32 v{12+bb}, v44, 5, v43")
stamp(1)
A(f"v_mov_b32 v53, {QFLAG}")
A("s_cmp_lg_u32 s20, 0")
A("s_cbranch_scc1 .Lq_wait")
get_nonce(52, 54)
stamp(2)
A("s_mul_i32 s31, s25, 1536")
A(f"s_add_u32 s31, s31, {WS_QT}")
A("v_lshlrev_b32 v55, 4, v1")
A("v_min_u32 v56, 496, v55")
def issue_q():
    A(f"buffer_load_dwordx4 v[16:19], v55, s[8:11], s31 offen sc1")
    A(f"buffer_load_dwordx4 v[20:23], v56, s[8:11], s31 offen offset:1024 sc1")
poll_tagged(issue_q, [17, 19, 21, 23], 44)
A("v_mov_b32 v17, v18")
A("v_mov_b32 v21, v22")
A("v_lshrrev_b32 v55, 1, v55")
A("v_lshrrev_b32 v56, 1, v56")
A(f"v_add_u32 v55, {QLDS}, v55")
A(f"v_add_u32 v56, {QLDS + 512}, v56")
A("ds_write_b64 v55, v[16:17]")
A("ds_write_b64 v56, v[20:21]")
A("s_waitcnt lgkmcnt(0)")
A("v_mov_b32 v54, 1")
A("ds_write_b32 v53, v54")
A.label(".Lq_wait")
A("ds_read_b32 v54, v53")
A("s_waitcnt lgkmcnt(0)")
A("v_readfirstlane_b32 s28, v54")
A("s_nop 0")
A("s_cmp_eq_u32 s28, 1")
A("s_cbranch_scc1 .Lq_ok")
A("s_sleep 1")
A("s_branch .Lq_wait")
A.label(".Lq_ok")
A(f"v_add_u32 v55, {QLDS}, v8")
for st in range(6):
    A(f"ds_read_b128 v[{16+4*st}:{19+4*st}], v55 offset:{64*st}")
for st in range(6):
    A(f"ds_read_b128 v[{176+4*st}:{179+4*st}], v55 offset:{384+64*st}")
A("s_waitcnt lgkmcnt(0)")
QA = 64; KB = 16; ACC = 40
def build_qa(src):
    for t in range(4):
        A(f"v_cmp_eq_u32 vcc, {4*t}, v7")
        A("s_nop 1")
        for r in range(24):
            A(f"v_cndmask_b32 v{QA+24*t+r}, 0, v{src+r}, vcc")

OACC = 64; VB = 112
LOOK = int(os.environ.get('LOOK', '6'))
def adv_rd():
    A("s_add_u32 s21, s21, 6144")
    A(f"s_cmp_eq_u32 s21, {RING}")
    A("s_cselect_b32 s21, 0, s21")
def mid_issue(j):
    if j == 2:
        gen_next(62, 65)
    tt = j + LOOK
    sk = None
    if LOOK < 6:
        sk = L("sk")
        A(f"s_cmp_lt_u32 s67, {6-LOOK}")
        A("s_addc_u32 s67, s67, 0")
        A(f"s_cbranch_scc1 {sk}") if False else None
    if LOOK < 6:
        A(f"s_cmp_le_u32 s67, {6-LOOK}")
        A(f"s_cselect_b32 s31, 1, 0")
        A("s_cmp_eq_u32 s68, 0")
        A(f"s_cbranch_scc1 {sk}_go")
        A("s_sub_u32 s68, s68, 1")
        A(f"s_branch {sk}")
        A.label(f"{sk}_go")
    if tt < 4: issue_tile(60, 63, tt)
    elif tt < 8: issue_tile(61, 64, tt - 4)
    else: issue_tile(62, 65, tt - 8)
    if sk: A.label(sk)
def rotate():
    A("s_mov_b32 s60, s61"); A("s_mov_b32 s63, s64")
    A("s_mov_b32 s61, s62"); A("s_mov_b32 s64, s65")
    A("s_add_u32 s66, s66, 1")

def issue_ml(hsel):
    A(f"buffer_load_dword v57, v52, s[12:15], 0 offen offset:128 sc1")
    A("s_lshl_b32 s35, s25, 10")
    A(f"s_add_u32 s35, s35, {WS_ML + 512*hsel}")
    A("v_lshlrev_b32 v56, 3, v1")
    A(f"buffer_load_dwordx2 v[50:51], v56, s[8:11], s35 offen sc1")

def kphase(hsel):
    lp = L("kloop")
    A("v_mov_b32 v54, 0xff800000")
    A("v_mov_b32 v45, 0")
    A("v_lshlrev_b32 v55, 1, v1")
    A(f"s_add_u32 s34, s32, {4*SCW*hsel}")
    A("v_add_u32 v55, s34, v55")
    A("s_mov_b32 s66, 0")
    A.label(lp)
    for t in range(4):
        A(f"s_waitcnt vmcnt({6*(LOOK-1)})")
        A("v_add_u32 v160, s21, v10")
        A("v_add_u32 v161, s21, v11")
        for st in range(6):
            A(f"ds_read_b128 v[{KB+4*st}:{KB+4*st+3}], v{160 + (st&1)} offset:{(st>>1)*128}")
        adv_rd()
        A("s_waitcnt lgkmcnt(0)")
        mid_issue(t)
        for st in range(6):
            c = "0" if (t == 0 and st == 0) else f"v[{ACC}:{ACC+3}]"
            A(f"v_mfma_f32_16x16x32_bf16 v[{ACC}:{ACC+3}], v[{QA+24*t+4*st}:{QA+24*t+4*st+3}], v[{KB+4*st}:{KB+4*st+3}], {c}")
    if hsel == 1:
        sk = L("skip")
        A(f"s_cmp_lg_u32 s66, {S_STATIC-3}")
        A(f"s_cbranch_scc1 {sk}")
        issue_ml(0)
        A.label(sk)
    A("s_nop 7")
    A("s_nop 1")
    A(f"v_cvt_pk_bf16_f32 v44, v{ACC}, v{ACC}")
    A("v_lshlrev_b32 v44, 16, v44")
    A(f"v_mul_f32 v44, {SCALE}, v44")
    A("v_cvt_pk_bf16_f32 v44, v44, v44")
    A("ds_write_b16 v55, v44")
    A("v_lshlrev_b32 v44, 16, v44")
    A("v_max_f32 v46, v54, v44")
    A("v_sub_f32 v47, v54, v46")
    A("v_sub_f32 v48, v44, v46")
    A(f"v_mul_f32 v47, {LOG2E}, v47")
    A(f"v_mul_f32 v48, {LOG2E}, v48")
    A("v_exp_f32 v47, v47")
    A("v_exp_f32 v48, v48")
    A("v_mov_b32 v54, v46")
    A("v_fma_f32 v45, v45, v47, v48")
    A("v_add_u32 v55, 128, v55")
    rotate()
    A("s_lshr_b32 s28, s60, 9")
    A(f"s_cmp_eq_u32 s28, {hsel}")
    A(f"s_cbranch_scc1 {lp}")
    A("v_mov_b32 v44, v54")
    wave_reduce(44, "v_max_f32")
    A("v_sub_f32 v47, v54, v44")
    A(f"v_mul_f32 v47, {LOG2E}, v47")
    A("v_exp_f32 v47, v47")
    A("s_nop 0")
    A("v_mul_f32 v45, v45, v47")
    wave_reduce(45, "v_add_f32")
    desentinel(44, 46); desentinel(45, 46)
    A("s_lshl_b32 s35, s25, 10")
    A("s_lshl_b32 s36, s27, 3")
    A("s_add_u32 s35, s35, s36")
    A(f"s_add_u32 s35, s35, {WS_ML + 512*hsel}")
    A("s_mov_b64 exec, 1")
    A(f"buffer_store_dwordx2 v[44:45], v52, s[8:11], s35 offen sc1")
    exec_all()

def vphase(hsel):
    ok = L("mlok"); slow = L("mlslow")
    A("v_cmp_gt_u32 vcc, 256, v57")
    A(f"s_cbranch_vccnz {slow}")
    A("v_max_u32 v53, v50, v51")
    A("v_cmp_eq_u32 vcc, -1, v53")
    A(f"s_cbranch_vccz {ok}")
    A.label(slow)
    poll_counter(128, 256, 52, 53)
    poll_loop(lambda: issue_ml(hsel), [50, 51], 53)
    A.label(ok)
    A("v_mov_b32 v44, v50")
    wave_reduce(44, "v_max_f32")
    A("v_sub_f32 v45, v50, v44")
    A(f"v_mul_f32 v45, {LOG2E}, v45")
    A("v_exp_f32 v45, v45")
    A("s_nop 0")
    A("v_mul_f32 v45, v45, v51")
    wave_reduce(45, "v_add_f32")
    A(f"s_add_u32 s34, s32, {4*SCW*hsel}")
    A("v_lshlrev_b32 v55, 1, v1")
    A("v_add_u32 v55, s34, v55")
    A("v_and_b32 v30, 31, v1")
    A("v_bfe_u32 v31, v30, 2, 2")
    A("v_lshlrev_b32 v31, 3, v31")
    A("v_bfe_u32 v32, v30, 4, 1")
    A("v_lshl_add_u32 v31, v32, 2, v31")
    A("v_and_b32 v32, 3, v30")
    A("v_add_u32 v31, v31, v32")
    A("v_lshlrev_b32 v31, 1, v31")
    A("v_lshrrev_b32 v32, 5, v1")
    A("v_lshl_add_u32 v31, v32, 6, v31")
    A("v_add_u32 v31, s34, v31")
    A("s_mov_b32 s66, 0")
    plp = L("ploop")
    A.label(plp)
    A("ds_read_u16 v47, v55")
    A("v_add_u32 v55, 128, v55")
    A("s_waitcnt lgkmcnt(0)")
    A("v_lshlrev_b32 v47, 16, v47")
    A("v_sub_f32 v47, v47, v44")
    A(f"v_mul_f32 v47, {LOG2E}, v47")
    A("v_exp_f32 v47, v47")
    A("v_mov_b32 v49, v45")
    fdiv(47, 47, 49, 56, 53)
    A("v_cvt_pk_bf16_f32 v47, v47, v47")
    A("ds_write_b16 v31, v47")
    A("v_add_u32 v31, 128, v31")
    A("s_add_u32 s66, s66, 1")
    A(f"s_cmp_lt_u32 s66, s{47+hsel}")
    A(f"s_cbranch_scc1 {plp}")
    A("v_lshlrev_b32 v55, 4, v6")
    A("v_add_u32 v55, s34, v55")
    for i in range(48):
        A(f"v_mov_b32 v{OACC+i}, 0")
    A("s_waitcnt lgkmcnt(0)")
    A("s_mov_b32 s66, 0")
    lp = L("vloop")
    A.label(lp)
    for step in range(2):
        A(f"ds_read_b128 v[20:23], v55 offset:{64*step}")
        for h in range(2):
            A(f"s_waitcnt vmcnt({6*(LOOK-1)})")
            for bb in range(4):
                A(f"v_add_u32 v{160+bb}, s21, v{12+bb}")
            for b in range(12):
                A(f"ds_read_b64_tr_b16 v[{VB+4*b+2*h}:{VB+4*b+2*h+1}], v{160+(b&3)} offset:{(b>>2)*128}")
            adv_rd()
            A("s_waitcnt lgkmcnt(0)")
            mid_issue(2*step + h)
        for b in range(12):
            A(f"v_mfma_f32_16x16x32_bf16 v[{OACC+4*b}:{OACC+4*b+3}], v[20:23], v[{VB+4*b}:{VB+4*b+3}], v[{OACC+4*b}:{OACC+4*b+3}]")
    if hsel == 0:
        sk = L("skip")
        A(f"s_cmp_lg_u32 s66, {S_STATIC-3}")
        A(f"s_cbranch_scc1 {sk}")
        issue_ml(1)
        A.label(sk)
    A("v_add_u32 v55, 128, v55")
    rotate()
    A("s_lshr_b32 s28, s60, 9")
    A(f"s_cmp_eq_u32 s28, {2+hsel}")
    A(f"s_cbranch_scc1 {lp}")
    A("s_nop 7")
    A("s_nop 1")
    A("v_lshlrev_b32 v56, 2, v1")
    A("v_add_u32 v56, s34, v56")
    A("s_mov_b64 exec, 0xffff")
    for b in range(12):
        A(f"ds_write_b32 v56, v{OACC+4*b} offset:{64*b}")
    exec_all()

stamp(3)
build_qa(16)
kphase(0)
stamp(4)
build_qa(176)
kphase(1)
stamp(5)
vphase(0)
stamp(6)
vphase(1)
stamp(7)
A("s_waitcnt vmcnt(0) lgkmcnt(0)")
A("s_branch .Ltail")

A.label(".Ltail")
A("s_barrier")
stamp(8)
A("v_lshlrev_b32 v3, 2, v1")
A("v_lshlrev_b32 v4, 2, v0")
A("v_mov_b32 v52, 0")
A("s_sub_u32 s27, s20, 4")
A("s_cmp_ge_u32 s20, 6")
A("s_cbranch_scc1 .Lt1_done")
A("v_cmp_le_u32 vcc, 192, v0")
A(f"v_mov_b32 v6, {4*SCW - 768}")
A("s_nop 0")
A("v_cndmask_b32 v5, 0, v6, vcc")
A("v_add_u32 v5, v5, v4")
A(f"v_add_u32 v5, {LDS_SC}, v5")
for w in range(4):
    A(f"ds_read_b32 v{20+w}, v5 offset:{SCW*w}")
A("s_waitcnt lgkmcnt(0)")
A("v_add_f32 v20, v20, v21")
A("v_add_f32 v22, v22, v23")
A("v_add_f32 v20, v20, v22")
desentinel(20, 24)
A("s_mul_i32 s28, s2, 1536")
A(f"s_add_u32 s28, s28, {WS_OP}")
A("buffer_store_dword v20, v4, s[8:11], s28 offen sc0 sc1")
A.label(".Lt1_done")
A("s_cmp_ge_u32 s2, 160")
A("s_cbranch_scc1 .Lt3")
A("s_mul_hi_u32 s30, s2, 0x1999999a")
A("s_cmp_ge_u32 s20, 6")
A("s_cbranch_scc1 .Lt2_b")
A("s_mul_i32 s28, s30, 24576")
A(f"s_add_u32 s28, s28, {WS_OP}")
def iss():
    for j in range(16):
        A(f"s_add_u32 s29, s28, {1536*j}")
        A(f"buffer_load_dword v{20+j}, v4, s[8:11], s29 offen sc1")
poll_loop(iss, list(range(20, 36)), 53)
for j in range(1, 16):
    A(f"v_add_f32 v20, v20, v{20+j}")
bf16r(20, 21)
A("ds_write_b32 v4, v20 offset:0")
A("s_waitcnt lgkmcnt(0)")
A.label(".Lt2_b")
stamp(9)
A("s_barrier")
A("s_cmp_lt_u32 s20, 4")
A("s_cbranch_scc1 .Lt2_c")
A("v_lshrrev_b32 v8, 3, v1")
A("s_mul_i32 s28, s27, 96")
A("v_add_u32 v8, s28, v8")
A("v_lshlrev_b32 v8, 2, v8")
for p in range(12):
    A(f"ds_read_b32 v{20+p}, v8 offset:{32*p}")
A("s_waitcnt lgkmcnt(0)")
gemv_fma8(64, 12, 40, 20, 8)
reduce8_rg8(40)
part_addr(8, 3, 9, 4096)
exec_low(3)
A("ds_write_b64 v8, v[40:41]")
exec_all()
A("s_waitcnt lgkmcnt(0)")
A.label(".Lt2_c")
A("s_barrier")
A("s_cmp_lg_u32 s20, 4")
A("s_cbranch_scc1 .Lend")
for w in range(4):
    A(f"ds_read_b32 v{20+w}, v3 offset:{4096 + 256*w}")
A("s_waitcnt lgkmcnt(0)")
A("v_add_f32 v20, v20, v21")
A("v_add_f32 v22, v22, v23")
A("v_add_f32 v20, v20, v22")
desentinel(20, 8)
A("s_lshl_b32 s28, s2, 8")
A(f"s_add_u32 s28, s28, {WS_AP}")
A("buffer_store_dword v20, v3, s[8:11], s28 offen sc0 sc1")
stamp(10)
A("s_branch .Lend")

A.label(".Lt3")
A("s_cmp_ge_u32 s2, 208")
A("s_cbranch_scc1 .Lt4")
mk_srd(44, 72, 1280)
A("v_lshlrev_b32 v2, 1, v0")
A("buffer_load_ushort v10, v2, s[44:47], 0 offen")
A("buffer_load_ushort v11, v2, s[44:47], 0 offen offset:1024")
A("v_cmp_gt_u32 vcc, 128, v0")
A("v_mov_b32 v6, 2048")
A("s_nop 0")
A("v_cndmask_b32 v5, 0, v6, vcc")
A("v_add_u32 v5, v5, v4")
def iss():
    for i, row in enumerate((2, 3, 4)):
        A(f"s_mov_b32 s29, {WS_MOD + 2560*row}")
        A(f"buffer_load_dword v{12+2*i}, v4, s[8:11], s29 offen sc1")
        A(f"buffer_load_dword v{13+2*i}, v5, s[8:11], s29 offen sc1")
    for j in range(16):
        A(f"s_mov_b32 s29, {WS_AP + 2560*j}")
        A(f"buffer_load_dword v{20+j}, v4, s[8:11], s29 offen sc1")
        A(f"buffer_load_dword v{144+j}, v5, s[8:11], s29 offen sc1")
poll_loop(iss, list(range(12, 18)) + list(range(20, 36)) + list(range(144, 160)), 53)
stamp(11)
for j in range(1, 16):
    A(f"v_add_f32 v20, v20, v{20+j}")
    A(f"v_add_f32 v144, v144, v{144+j}")
A("v_mov_b32 v21, v144")
A("v_cmp_gt_u32 vcc, 128, v0")
for i in range(2):
    a = 20 + i
    bf16r(a, 8)
    A(f"v_mul_f32 v{a}, v{a}, v{12+i}")
    bf16r(a, 8)
    A(f"v_lshlrev_b32 v{10+i}, 16, v{10+i}")
    A(f"v_add_f32 v{10+i}, v{10+i}, v{a}")
    bf16r(10+i, 8)
A("v_cndmask_b32 v11, 0, v11, vcc")
A("v_cndmask_b32 v7, 0, 1.0, vcc")
def wg_sum(v):
    wave_reduce(v, "v_add_f32")
    A("s_lshl_b32 s28, s20, 2")
    A("v_mov_b32 v9, s28")
    A(f"ds_write_b32 v9, v{v} offset:4096")
    A("s_waitcnt lgkmcnt(0)")
    A("s_barrier")
    A(f"ds_read_b128 v[36:39], v52 offset:4096")
    A(f"ds_read_b128 v[40:43], v52 offset:4112")
    A("s_waitcnt lgkmcnt(0)")
    A(f"v_add_f32 v{v}, v36, v37")
    for r in range(38, 44):
        A(f"v_add_f32 v{v}, v{v}, v{r}")
    A("s_barrier")
A("v_add_f32 v18, v10, v11")
wg_sum(18)
A("v_mul_f32 v18, 0x3acccccd, v18")
A("v_sub_f32 v8, v10, v18")
A("v_mul_f32 v19, v8, v8")
A("v_sub_f32 v8, v11, v18")
A("v_mul_f32 v8, v8, v7")
A("v_fma_f32 v19, v8, v8, v19")
wg_sum(19)
A("v_mul_f32 v19, 0x3acccccd, v19")
bf16r(18, 8); bf16r(19, 8)
A("v_add_f32 v19, 0x3727c5ac, v19")
bf16r(19, 8)
A("v_sqrt_f32 v19, v19")
A("s_nop 0")
bf16r(19, 8)
for i in range(2):
    d = 10 + i
    A(f"v_sub_f32 v{d}, v{d}, v18")
    bf16r(d, 8)
    A("v_mov_b32 v9, v19")
    fdiv(d, d, 9, 36, 37)
    bf16r(d, 8)
    A(f"v_add_f32 v{16+i}, 1.0, v{16+i}")
    bf16r(16+i, 8)
    A(f"v_mul_f32 v{d}, v{d}, v{16+i}")
    bf16r(d, 8)
    A(f"v_add_f32 v{d}, v{d}, v{14+i}")
    bf16r(d, 8)
    A(f"ds_write_b32 v4, v{d} offset:{2048*i}")
A("s_waitcnt lgkmcnt(0)")
A("s_barrier")
A("s_cmp_lt_u32 s20, 4")
A("s_cbranch_scc1 .Lt3_c")
A("v_lshrrev_b32 v8, 2, v1")
A("s_mul_i32 s28, s27, 160")
A("v_add_u32 v8, s28, v8")
A("v_lshlrev_b32 v8, 2, v8")
for p in range(10):
    A(f"ds_read_b32 v{20+p}, v8 offset:{64*p}")
A("s_waitcnt lgkmcnt(0)")
gemv_fma8(64, 10, 40, 20, 8)
gemv_fma8(104, 10, 32, 20, 8)
reduce8_rg4(40); reduce8_rg4(32)
part_addr(8, 2, 9, 8192)
exec_low(2)
A("ds_write_b64 v8, v[40:41]")
A("ds_write_b64 v8, v[32:33] offset:512")
exec_all()
A("s_waitcnt lgkmcnt(0)")
A.label(".Lt3_c")
A("s_barrier")
A("s_cmp_lg_u32 s20, 4")
A("s_cbranch_scc1 .Lend")
for w in range(4):
    A(f"ds_read_b32 v{20+w}, v3 offset:{8192 + 128*w}")
    A(f"ds_read_b32 v{24+w}, v3 offset:{8192 + 512 + 128*w}")
A("s_waitcnt lgkmcnt(0)")
for b in (20, 24):
    A(f"v_add_f32 v{b}, v{b}, v{b+1}")
    A(f"v_add_f32 v{b+2}, v{b+2}, v{b+3}")
    A(f"v_add_f32 v{b}, v{b}, v{b+2}")
    bf16r(b, 8)
silu(20, 8)
bf16r(20, 8)
A("v_mul_f32 v20, v20, v24")
bf16r(20, 8)
desentinel(20, 8)
A("s_sub_u32 s28, s2, 160")
A("s_lshl_b32 s28, s28, 7")
A(f"s_add_u32 s28, s28, {WS_ACT}")
A("s_mov_b64 exec, 0xffffffff")
A("buffer_store_dword v20, v3, s[8:11], s28 offen sc0 sc1")
exec_all()
stamp(12)
A("s_branch .Lend")

A.label(".Lt4")
A("s_cmp_ge_u32 s2, 248")
A("s_cbranch_scc1 .Lend")
A("s_cmp_lt_u32 s20, 4")
A("s_cbranch_scc1 .Lt4_s")
mk_srd(44, 72, 1280)
A("s_sub_u32 s31, s2, 208")
A("s_lshl_b32 s31, s31, 4")
A("v_and_b32 v6, 15, v1")
A("v_add_u32 v6, s31, v6")
A("v_lshlrev_b32 v7, 1, v6")
A("v_lshlrev_b32 v6, 2, v6")
A("buffer_load_ushort v10, v7, s[44:47], 0 offen")
def iss():
    A(f"s_mov_b32 s29, {WS_MOD + 2560*2}")
    A(f"buffer_load_dword v12, v6, s[8:11], s29 offen sc1")
    A(f"s_mov_b32 s29, {WS_MOD + 2560*5}")
    A(f"buffer_load_dword v13, v6, s[8:11], s29 offen sc1")
    for j in range(16):
        A(f"s_mov_b32 s29, {WS_AP + 2560*j}")
        A(f"buffer_load_dword v{20+j}, v6, s[8:11], s29 offen sc1")
poll_loop(iss, [12, 13] + list(range(20, 36)), 53)
for j in range(1, 16):
    A(f"v_add_f32 v20, v20, v{20+j}")
bf16r(20, 8)
A("v_mul_f32 v20, v20, v12")
bf16r(20, 8)
A("v_lshlrev_b32 v10, 16, v10")
A("v_add_f32 v10, v10, v20")
bf16r(10, 8)
A("v_lshrrev_b32 v8, 1, v1")
A("s_mul_i32 s28, s27, 384")
A("v_add_u32 v8, s28, v8")
A("v_lshlrev_b32 v14, 2, v8")
A(f"s_mov_b32 s28, {WS_ACT}")
def iss():
    for p in range(12):
        A(f"buffer_load_dword v{20+p}, v14, s[8:11], s28 offen offset:{128*p} sc1")
poll_loop(iss, list(range(20, 32)), 53)
stamp(13)
gemv_fma8(64, 12, 40, 20, 8)
reduce8_rg2(40)
part_addr(8, 1, 9, 0)
exec_low(1)
A("ds_write_b64 v8, v[40:41]")
exec_all()
A("s_waitcnt lgkmcnt(0)")
A.label(".Lt4_s")
A("s_barrier")
A("s_cmp_lg_u32 s20, 4")
A("s_cbranch_scc1 .Lend")
A("v_and_b32 v8, 15, v1")
A("v_lshlrev_b32 v8, 2, v8")
for w in range(4):
    A(f"ds_read_b32 v{20+w}, v8 offset:{64*w}")
A("s_waitcnt lgkmcnt(0)")
A("v_add_f32 v20, v20, v21")
A("v_add_f32 v22, v22, v23")
A("v_add_f32 v20, v20, v22")
bf16r(20, 9)
A("v_mul_f32 v20, v20, v13")
bf16r(20, 9)
A("v_add_f32 v20, v20, v10")
A("v_cvt_pk_bf16_f32 v20, v20, v20")
mk_srd(68, 94, 1280)
A("s_mov_b64 exec, 0xffff")
A("buffer_store_short v20, v7, s[68:71], 0 offen")
exec_all()
stamp(14)
A.label(".Lend")
A("s_endpgm")

def fix_offsets(text):
    outl = []
    for line in text.split("\n"):
        m = re.match(r"^(\s*buffer_\w+ .*, s\[\d+:\d+\]), (\S+) offen offset:(\d+)(.*)$", line)
        if m and int(m.group(3)) >= 4096:
            off = int(m.group(3)); so = m.group(2)
            if so == "0":
                outl.append(f"    s_mov_b32 s100, {off}")
            else:
                outl.append(f"    s_add_u32 s100, {so}, {off}")
            outl.append(f"{m.group(1)}, s100 offen{m.group(4)}")
        else:
            outl.append(line)
    return "\n".join(outl)
body = fix_offsets(A.text())
launch = f"; @launch grid=(256,1,1) block=(512,1,1) lds={LDS_TOTAL}\n"
out = HEADER + launch + '.amdgcn_target "amdgcn-amd-amdhsa--gfx950"\n.text\n' + body + '.section .rodata,"a"\n.p2align 6\n' + kernel_desc(NAME, 256)
open(sys.argv[1], "w").write(out)
```

```python
import sys, struct, re
from asmlib import *

NS = int(sys.argv[2]) if len(sys.argv) > 2 else 6
FILLW = int(sys.argv[4]) if len(sys.argv) > 4 else 2
PREF = int(sys.argv[5]) if len(sys.argv) > 5 else 0
LATEFILL = FILLW == 0
if LATEFILL: FILLW = 6
NAME = "adaLN_cond__mha_block_cached__swiglu_ffn__decode_kernel"

WS_MOD = 0x0000
WS_Q   = 0x4000
WS_ML  = 0x8000
WS_OP  = 0x10000
WS_AP  = 0x70000
WS_ACT = 0x7A000
WS_MODT = 0xC000
WS_XP = 0xF000
WS_QT = 0x80000
WS_SIZE = 0x200000
KV_BYTES = 402653184
HEADB = 12582912
LOG2E = 0x3fb8aa3b
SCALE = 0x3d93cd3a
RING = NS * 6144
CAP = 14
SCW = CAP * 128
LDS_SC = 4 * RING
LDS_SCB = LDS_SC + 4 * SCW
LDS_MISC = LDS_SC + 8 * SCW
LDS_TOTAL = LDS_MISC + 2048
MODL = LDS_SCB
QLDS = LDS_SCB + 5120
QFLAG = LDS_SCB + 5888
MFLAG = LDS_SCB + 5892
import os
S_STATIC = int(os.environ.get('S_STATIC', '6'))
POOL = 512 - 64 * S_STATIC
POOLSH = max(POOL, 1).bit_length() - 1
PQ = LDS_MISC + 1024 + 16
PQE = LDS_MISC + 1280
FLEX = os.environ.get('FLEX', '1') == '1'
BA = int(os.environ.get('BA', '2')); BB = int(os.environ.get('BB', '1'))
BIASW = LDS_MISC + 1024 + 28
BATCH = int(os.environ.get('BATCH', '4'))
assert LDS_TOTAL <= 163840
SPIN_LIMIT = 400000

A = Asm()
def L(p): return A.newlabel(p)
STAMP = len(sys.argv) > 3 and sys.argv[3] == "stamp"
WS_TS = 0x100000
def stamp(idx):
    if not STAMP: return
    A("s_memrealtime s[46:47]" if False else "s_memrealtime s[36:37]")
    A("s_waitcnt lgkmcnt(0)")
    A("v_mov_b32 v58, s36")
    A("v_mov_b32 v59, s37")
    A("v_mov_b32 v60, 0")
    A("s_lshl_b32 s36, s2, 3")
    A("s_add_u32 s36, s36, s20")
    A("s_lshl_b32 s36, s36, 8")
    A(f"s_add_u32 s36, s36, {WS_TS + 8*idx}")
    A("s_mov_b64 exec, 1")
    A("buffer_store_dwordx2 v[58:59], v60, s[8:11], s36 offen")
    A("s_mov_b64 exec, -1")

def sval(idx, sreg, sreg2):
    if not STAMP: return
    A(f"v_mov_b32 v58, s{sreg}")
    A(f"v_mov_b32 v59, s{sreg2}")
    A("v_mov_b32 v60, 0")
    A("s_lshl_b32 s36, s2, 3")
    A("s_add_u32 s36, s36, s20")
    A("s_lshl_b32 s36, s36, 8")
    A(f"s_add_u32 s36, s36, {WS_TS + 8*idx}")
    A("s_mov_b64 exec, 1")
    A("buffer_store_dwordx2 v[58:59], v60, s[8:11], s36 offen")
    A("s_mov_b64 exec, -1")

def bf16r(v, t):
    A(f"v_cvt_pk_bf16_f32 v{t}, v{v}, v{v}")
    A(f"v_lshlrev_b32 v{v}, 16, v{t}")

def row_reduce(vs, op):
    for ctl in ("quad_perm:[1,0,3,2]", "quad_perm:[2,3,0,1]", "row_half_mirror", "row_mirror"):
        if len(vs) < 3:
            A("s_nop 1")
        for v in vs:
            A(f"{op}_dpp v{v}, v{v}, v{v} {ctl} row_mask:0xf bank_mask:0xf")

def wave_reduce(v, op, s=40):
    row_reduce([v], op)
    A("s_nop 1")
    for i in range(4):
        A(f"v_readlane_b32 s{s+i}, v{v}, {16*i}")
    A("s_nop 1")
    A(f"v_mov_b32 v{v}, s{s}")
    for i in range(1, 4):
        A(f"{op} v{v}, s{s+i}, v{v}")

def fdiv(d, n, den, t0, t1):
    A(f"v_rcp_f32 v{t0}, v{den}")
    A("s_nop 0")
    A(f"v_mul_f32 v{t1}, v{n}, v{t0}")
    A(f"v_fma_f32 v{den}, -v{t1}, v{den}, v{n}")
    A(f"v_fma_f32 v{d}, v{den}, v{t0}, v{t1}")

def silu(v, t):
    A(f"v_mov_b32 v{t+3}, 0x200")
    A(f"v_mul_f32 v{t}, 0xbfb8aa3b, v{v}")
    A(f"v_exp_f32 v{t}, v{t}")
    A("s_nop 0")
    A(f"v_add_f32 v{t}, 1.0, v{t}")
    A(f"v_cmp_class_f32 vcc, v{t}, v{t+3}")
    A(f"v_rcp_f32 v{t+1}, v{t}")
    A("s_nop 0")
    A(f"v_mul_f32 v{t+2}, v{v}, v{t+1}")
    A(f"v_fma_f32 v{t}, -v{t+2}, v{t}, v{v}")
    A(f"v_fma_f32 v{v}, v{t}, v{t+1}, v{t+2}")
    A(f"v_cndmask_b32 v{v}, v{v}, v{t+2}, vcc")

def desentinel(v, t):
    A(f"v_mov_b32 v{t}, 0x7fc00000")
    A(f"v_cmp_eq_u32 vcc, -1, v{v}")
    A("s_nop 1")
    A(f"v_cndmask_b32 v{v}, v{v}, v{t}, vcc")

def poll_loop(issue, regs, vt, scnt=39):
    lp = L("poll"); done = L("polld")
    A(f"s_mov_b32 s{scnt}, 0")
    A.label(lp)
    issue()
    A("s_waitcnt vmcnt(0)")
    rs = list(regs)
    A(f"v_mov_b32 v{vt}, v{rs[0]}")
    i = 1
    while i < len(rs):
        if i + 1 < len(rs):
            A(f"v_max3_u32 v{vt}, v{vt}, v{rs[i]}, v{rs[i+1]}"); i += 2
        else:
            A(f"v_max_u32 v{vt}, v{vt}, v{rs[i]}"); i += 1
    A(f"v_cmp_eq_u32 vcc, -1, v{vt}")
    A(f"s_cbranch_vccz {done}")
    A(f"s_add_u32 s{scnt}, s{scnt}, 1")
    A(f"s_cmp_gt_u32 s{scnt}, {SPIN_LIMIT}")
    A(f"s_cbranch_scc1 {done}")
    A("s_sleep 1")
    A(f"s_branch {lp}")
    A.label(done)

def poll_counter(off, target, vz, vt, scnt=39):
    lp = L("pc"); done = L("pcd")
    A(f"s_mov_b32 s{scnt}, 0")
    A.label(lp)
    A(f"buffer_load_dword v{vt}, v{vz}, s[12:15], 0 offen offset:{off} sc1")
    A("s_waitcnt vmcnt(0)")
    A(f"v_readfirstlane_b32 s38, v{vt}")
    A("s_nop 0")
    A(f"s_cmp_ge_u32 s38, {target}")
    A(f"s_cbranch_scc1 {done}")
    A(f"s_add_u32 s{scnt}, s{scnt}, 1")
    A(f"s_cmp_gt_u32 s{scnt}, {SPIN_LIMIT}")
    A(f"s_cbranch_scc1 {done}")
    A("s_sleep 1")
    A(f"s_branch {lp}")
    A.label(done)

def get_nonce(vz, vt, scnt=39):
    lp = L("gn"); done = L("gnd")
    A(f"s_mov_b32 s{scnt}, 0")
    A.label(lp)
    A(f"buffer_load_dword v{vt}, v{vz}, s[12:15], 0 offen sc1")
    A("s_waitcnt vmcnt(0)")
    A(f"v_readfirstlane_b32 s70, v{vt}")
    A("s_nop 0")
    A(f"s_cmp_lg_u32 s70, 0")
    A(f"s_cbranch_scc1 {done}")
    A(f"s_add_u32 s{scnt}, s{scnt}, 1")
    A(f"s_cmp_gt_u32 s{scnt}, {SPIN_LIMIT}")
    A(f"s_cbranch_scc1 {done}")
    A("s_sleep 2")
    A(f"s_branch {lp}")
    A.label(done)

def poll_tagged(issue, tags, vt, scnt=39):
    lp = L("pt"); done = L("ptd")
    A(f"s_mov_b32 s{scnt}, 0")
    A.label(lp)
    issue()
    A("s_waitcnt vmcnt(0)")
    A(f"v_xor_b32 v{vt}, s70, v{tags[0]}")
    for t in tags[1:]:
        A(f"v_xor_b32 v{vt+1}, s70, v{t}")
        A(f"v_or_b32 v{vt}, v{vt}, v{vt+1}")
    A(f"v_cmp_ne_u32 vcc, 0, v{vt}")
    A(f"s_cbranch_vccz {done}")
    A(f"s_add_u32 s{scnt}, s{scnt}, 1")
    A(f"s_cmp_gt_u32 s{scnt}, {SPIN_LIMIT}")
    A(f"s_cbranch_scc1 {done}")
    A("s_sleep 2")
    A(f"s_branch {lp}")
    A.label(done)

def gemv_fma8(vw, npass, vacc, vx, vt, stride=4):
    for p in range(npass):
        for i in range(4):
            w = vw + stride*p + i
            A(f"v_lshlrev_b32 v{vt}, 16, v{w}")
            A(f"v_and_b32 v{vt+1}, 0xffff0000, v{w}")
            if p == 0:
                A(f"v_mul_f32 v{vacc+2*i}, v{vx+p}, v{vt}")
                A(f"v_mul_f32 v{vacc+2*i+1}, v{vx+p}, v{vt+1}")
            else:
                A(f"v_fmac_f32 v{vacc+2*i}, v{vx+p}, v{vt}")
                A(f"v_fmac_f32 v{vacc+2*i+1}, v{vx+p}, v{vt+1}")

def reduce8(a):
    A("s_nop 1")
    for i in range(4):
        A(f"v_permlane32_swap_b32 v{a+i}, v{a+4+i}")
    for i in range(4):
        A(f"v_add_f32 v{a+i}, v{a+i}, v{a+4+i}")
    A("s_nop 1")
    for i in range(2):
        A(f"v_permlane16_swap_b32 v{a+i}, v{a+2+i}")
    for i in range(2):
        A(f"v_add_f32 v{a+i}, v{a+i}, v{a+2+i}")
    row_reduce([a, a+1], "v_add_f32")

def exec_rows():
    A("s_mov_b32 exec_lo, 0x00010001")
    A("s_mov_b32 exec_hi, 0x00010001")
def exec_all():
    A("s_mov_b64 exec, -1")

kernel_header(A, NAME)
A("s_cmp_ge_u32 s2, 256")
A("s_cbranch_scc1 .Lend")
A("s_load_dwordx8 s[72:79], s[0:1], 0")
A("s_load_dwordx8 s[80:87], s[0:1], 32")
A("s_load_dwordx8 s[88:95], s[0:1], 64")
A("s_load_dwordx4 s[96:99], s[0:1], 96")
A("v_lshrrev_b32 v1, 6, v0")
A("s_nop 0")
A("v_readfirstlane_b32 s20, v1")
A("v_and_b32 v1, 63, v0")
A("s_lshr_b32 s25, s2, 4")
A("s_and_b32 s26, s2, 15")
if PREF:
    A("s_getpc_b64 s[28:29]")
    A("s_and_b32 s28, s28, 0xffffff00")
    A("v_lshlrev_b32 v2, 4, v0")
    for i in range(PREF):
        A(f"v_min_u32 v3, .Lend-{NAME}-12, v2")
        A(f"global_load_dwordx4 v[252:255], v3, s[28:29]")
        A("v_add_u32 v2, 0x2000, v2")
A("s_waitcnt lgkmcnt(0)")
def mk_srd(d, p, n):
    A(f"s_mov_b32 s{d}, s{p}"); A(f"s_mov_b32 s{d+1}, s{p+1}")
    A(f"s_mov_b32 s{d+2}, {n}"); A(f"s_mov_b32 s{d+3}, 0x00020000")
mk_srd(8, 98, WS_SIZE)
mk_srd(12, 96, 256)
A("s_mov_b32 s16, s74"); A("s_mov_b32 s17, s75")
A("s_mov_b32 s18, s76"); A("s_mov_b32 s19, s77")
A("s_cmp_lt_u32 s20, 4")
A("s_cbranch_scc1 .Lstream")
A.label(".Laux")
A("s_setprio 3")
A("s_sub_u32 s27, s20, 4")
A("v_mov_b32 v52, 0")
A("v_lshlrev_b32 v2, 1, v1")
A("v_lshlrev_b32 v3, 2, v1")
SYNC = LDS_MISC + 1024
A("s_cmp_lg_u32 s27, 0")
A("s_cbranch_scc1 .Lnosync")
A(f"v_mov_b32 v8, {SYNC}")
A("v_mov_b32 v10, 0"); A("v_mov_b32 v11, 0")
A("ds_write_b64 v8, v[10:11]")
A("ds_write_b64 v8, v[10:11] offset:8")
A("ds_write_b64 v8, v[10:11] offset:16")
A("ds_write_b64 v8, v[10:11] offset:24")
A("v_mov_b32 v11, 0x7fffffff")
A("ds_write_b32 v8, v11 offset:28")
A("v_mov_b32 v11, 0")
A(f"v_mov_b32 v8, {QFLAG}")
A("ds_write_b64 v8, v[10:11]")
A("s_waitcnt lgkmcnt(0)")
A.label(".Lnosync")
A("s_barrier")
A("s_cmp_lg_u32 s2, 0")
A("s_cbranch_scc1 .Lnononce")
A("s_cmp_lg_u32 s27, 0")
A("s_cbranch_scc1 .Lnononce")
A("s_memrealtime s[70:71]")
A("s_waitcnt lgkmcnt(0)")
A("s_or_b32 s70, s70, 1")
A("v_mov_b32 v9, s70")
A("s_mov_b64 exec, 1")
A("buffer_store_dword v9, v52, s[12:15], 0 offen sc0 sc1")
exec_all()
A.label(".Lnononce")
stamp(0)
mk_srd(44, 72, 1280)
mk_srd(48, 90, 1280)
mk_srd(52, 92, 640*3840*2)
mk_srd(56, 78, 640*6144*2)
A("v_lshrrev_b32 v4, 2, v1")
A("v_and_b32 v5, 3, v1")
A("s_mul_i32 s28, s27, 160")
A("v_add_u32 v6, s28, v4")
A("v_lshlrev_b32 v7, 1, v6")
A("v_lshlrev_b32 v14, 2, v6")
A("s_cmp_lg_u32 s27, 0")
A("s_cbranch_scc1 .Lnoclear")
A("v_mov_b32 v9, -1")
A("s_mov_b64 exec, 0xffffffff")
A("s_cmp_ge_u32 s2, 120")
A("s_cbranch_scc1 .Lclr1")
A("s_lshl_b32 s28, s2, 7")
A(f"buffer_store_dword v9, v3, s[8:11], s28 offen offset:{WS_MOD} sc0 sc1")
A.label(".Lclr1")
A.label(".Lclr2")
A("s_mov_b64 exec, 0xff")
A("s_lshl_b32 s28, s25, 10")
A("s_lshl_b32 s29, s26, 5")
A("s_add_u32 s28, s28, s29")
A(f"s_add_u32 s28, s28, {WS_ML}")
A(f"buffer_store_dword v9, v3, s[8:11], s28 offen sc0 sc1")
A(f"buffer_store_dword v9, v3, s[8:11], s28 offen offset:512 sc0 sc1")
exec_all()
A("s_mul_i32 s28, s2, 1536")
A(f"s_add_u32 s28, s28, {WS_OP}")
A("v_lshlrev_b32 v8, 4, v1")
A("v_mov_b32 v10, -1"); A("v_mov_b32 v11, -1"); A("v_mov_b32 v12, -1"); A("v_mov_b32 v13, -1")
A(f"buffer_store_dwordx4 v[10:13], v8, s[8:11], s28 offen sc0 sc1")
A("s_mov_b64 exec, 0xffffffff")
A(f"buffer_store_dwordx4 v[10:13], v8, s[8:11], s28 offen offset:1024 sc0 sc1")
exec_all()
A("s_cmp_ge_u32 s2, 160")
A("s_cbranch_scc1 .Lclr3")
A("s_lshl_b32 s28, s2, 8")
A(f"s_add_u32 s28, s28, {WS_AP}")
A(f"buffer_store_dword v9, v3, s[8:11], s28 offen sc0 sc1")
A("s_branch .Lclr4")
A.label(".Lclr3")
A("s_sub_u32 s28, s2, 160")
A("s_cmp_ge_u32 s28, 48")
A("s_cbranch_scc1 .Lclr4")
A("s_mov_b64 exec, 0xffffffff")
A("s_lshl_b32 s28, s28, 7")
A(f"s_add_u32 s28, s28, {WS_ACT}")
A(f"buffer_store_dword v9, v3, s[8:11], s28 offen sc0 sc1")
exec_all()
A.label(".Lclr4")
A("buffer_load_dword v62, v52, s[12:15], 0 offen sc1")
A.label(".Lnoclear")
A("s_cmp_ge_u32 s2, 64")
A("s_cbranch_scc1 .Lld_q")
for p in range(10):
    A(f"buffer_load_ushort v{16+p}, v7, s[48:51], 0 offen offset:{32*p}")
A("v_mul_u32_u24 v8, 7680, v6")
A("v_lshl_add_u32 v8, v5, 4, v8")
A("s_lshl_b32 s28, s2, 6")
for p in range(10):
    A(f"buffer_load_dwordx4 v[{64+4*p}:{67+4*p}], v8, s[52:55], s28 offen")
    A(f"s_add_u32 s28, s28, {16*7680}")
A("s_branch .Lld_done20")
A.label(".Lld_q")
for p in range(10):
    A(f"buffer_load_ushort v{16+p}, v7, s[44:47], 0 offen offset:{32*p}")
for p in range(10):
    A(f"buffer_load_ushort v{28+p}, v2, s[44:47], 0 offen offset:{128*p}")
A("v_mul_u32_u24 v8, 12288, v6")
A("v_lshl_add_u32 v8, v5, 4, v8")
A("s_sub_u32 s28, s2, 64")
A("s_lshl_b32 s28, s28, 6")
for p in range(10):
    A(f"buffer_load_dwordx4 v[{104+4*p}:{107+4*p}], v8, s[56:59], s28 offen")
    A(f"s_add_u32 s28, s28, {16*12288}")
A.label(".Lld_done")
A("s_waitcnt vmcnt(30)")
A.label(".Lld_done20")
A("s_waitcnt vmcnt(20)")
stamp(1)
A("s_cmp_lg_u32 s27, 0")
A("s_cbranch_scc1 .Lnoatom")
A("v_mov_b32 v9, 1")
A("s_mov_b64 exec, 1")
A("buffer_atomic_add v9, v52, s[12:15], 0 offen offset:128 sc1")
exec_all()
A("v_readfirstlane_b32 s70, v62")
A("s_nop 0")
A("s_cmp_lg_u32 s70, 0")
A("s_cbranch_scc1 .Lhavenonce")
get_nonce(52, 9)
A.label(".Lhavenonce")
if FLEX:
    A("s_getreg_b32 s28, hwreg(HW_REG_XCC_ID)")
    A("s_and_b32 s69, s28, 1")
    A("v_mov_b32 v10, s69")
    A("v_mov_b32 v11, s70")
    A("s_lshl_b32 s28, s2, 3")
    A(f"s_add_u32 s28, s28, {WS_XP}")
    A("s_mov_b64 exec, 1")
    A("buffer_store_dwordx2 v[10:11], v52, s[8:11], s28 offen sc1")
    exec_all()
A.label(".Lnoatom")
stamp(2)


def reduce8_rg4(a):
    A("s_nop 1")
    for i in range(4):
        A(f"v_permlane32_swap_b32 v{a+i}, v{a+4+i}")
    for i in range(4):
        A(f"v_add_f32 v{a+i}, v{a+i}, v{a+4+i}")
    A("s_nop 1")
    for i in range(2):
        A(f"v_permlane16_swap_b32 v{a+i}, v{a+2+i}")
    for i in range(2):
        A(f"v_add_f32 v{a+i}, v{a+i}, v{a+2+i}")
    for ctl in ("row_ror:4", "row_ror:8"):
        A("s_nop 1")
        for i in range(2):
            A(f"v_add_f32_dpp v{a+i}, v{a+i}, v{a+i} {ctl} row_mask:0xf bank_mask:0xf")

def reduce8_rg8(a):
    A("s_nop 1")
    for i in range(4):
        A(f"v_permlane32_swap_b32 v{a+i}, v{a+4+i}")
    for i in range(4):
        A(f"v_add_f32 v{a+i}, v{a+i}, v{a+4+i}")
    A("s_nop 1")
    for i in range(2):
        A(f"v_permlane16_swap_b32 v{a+i}, v{a+2+i}")
    for i in range(2):
        A(f"v_add_f32 v{a+i}, v{a+i}, v{a+2+i}")
    A("s_nop 1")
    for i in range(2):
        A(f"v_add_f32_dpp v{a+i}, v{a+i}, v{a+i} row_ror:8 row_mask:0xf bank_mask:0xf")

def reduce8_rg2(a):
    A("s_nop 1")
    for i in range(4):
        A(f"v_permlane32_swap_b32 v{a+i}, v{a+4+i}")
    for i in range(4):
        A(f"v_add_f32 v{a+i}, v{a+i}, v{a+4+i}")
    A("s_nop 1")
    for i in range(2):
        A(f"v_permlane16_swap_b32 v{a+i}, v{a+2+i}")
    for i in range(2):
        A(f"v_add_f32 v{a+i}, v{a+i}, v{a+2+i}")
    for ctl in ("row_ror:2", "row_ror:4", "row_ror:8"):
        A("s_nop 1")
        for i in range(2):
            A(f"v_add_f32_dpp v{a+i}, v{a+i}, v{a+i} {ctl} row_mask:0xf bank_mask:0xf")

def part_addr(vdst, ncl_log, vt, base):
    A(f"v_lshrrev_b32 v{vt}, 4, v1")
    A(f"v_and_b32 v{vdst}, 1, v{vt}")
    A(f"v_lshrrev_b32 v{vt}, 1, v{vt}")
    A(f"v_lshlrev_b32 v{vdst}, 3, v{vdst}")
    A(f"v_lshl_add_u32 v{vdst}, v{vt}, 4, v{vdst}")
    A(f"v_and_b32 v{vt}, {(1<<ncl_log)-1}, v1")
    A(f"v_lshl_add_u32 v{vdst}, v{vt}, 5, v{vdst}")
    A(f"s_mul_i32 s28, s27, {(8<<ncl_log)*4}")
    A(f"s_add_u32 s28, s28, {base}")
    A(f"v_add_u32 v{vdst}, s28, v{vdst}")

def exec_low(ncl_log):
    m16 = (1 << (1 << ncl_log)) - 1
    m32 = m16 | (m16 << 16)
    A(f"s_mov_b32 exec_lo, {m32:#x}")
    A(f"s_mov_b32 exec_hi, {m32:#x}")

PRO_RED = LDS_MISC

def silu_c():
    for p in range(10):
        A(f"v_lshlrev_b32 v{16+p}, 16, v{16+p}")
        silu(16+p, 8)
        bf16r(16+p, 8)

def job_partial(vw, red):
    gemv_fma8(vw, 10, 40, 16, 8)
    reduce8_rg4(40)
    part_addr(8, 2, 9, red)
    exec_low(2)
    A("ds_write_b64 v8, v[40:41]")
    exec_all()
    A("s_waitcnt lgkmcnt(0)")

def aux_arrive(ph):
    A(f"v_mov_b32 v8, {SYNC + 4*ph}")
    A("v_mov_b32 v9, 1")
    A("s_mov_b64 exec, 1")
    A("ds_add_u32 v8, v9")
    exec_all()

def aux_wait(ph):
    lp = L("aw")
    A(f"v_mov_b32 v8, {SYNC + 4*ph}")
    A.label(lp)
    A("ds_read_b32 v9, v8")
    A("s_waitcnt lgkmcnt(0)")
    A("v_readfirstlane_b32 s28, v9")
    A("s_nop 0")
    A("s_cmp_lt_u32 s28, 4")
    A(f"s_cbranch_scc1 {lp}")

def job_final(red, dst):
    A(f"v_add_u32 v8, {red}, v3")
    for w in range(4):
        A(f"ds_read_b32 v{44+w}, v8 offset:{128*w}")
    A("s_waitcnt lgkmcnt(0)")
    A("v_add_f32 v44, v44, v45")
    A("v_add_f32 v46, v46, v47")
    A("v_add_f32 v44, v44, v46")

A("s_cmp_ge_u32 s2, 64")
A("s_cbranch_scc1 .Lp1_q")
A("s_waitcnt vmcnt(10)")
stamp(16)
silu_c()
stamp(17)
A("s_waitcnt vmcnt(0)")
A(f"v_mov_b32 v8, {SYNC + 12}")
A("v_mov_b32 v9, 1")
A("s_mov_b64 exec, 1")
A("ds_add_u32 v8, v9")
exec_all()
stamp(18)
job_partial(64, PRO_RED)
stamp(19)
aux_arrive(0)
A("s_cmp_lg_u32 s27, 0")
A("s_cbranch_scc1 .Lp1_done")
aux_wait(0)
stamp(20)
job_final(PRO_RED, None)
bf16r(44, 8)
A("s_mov_b64 exec, 0xffffffff")
A("s_cmp_ge_u32 s2, 40")
A("s_cbranch_scc1 .Lp1_nc")
A("v_mov_b32 v45, s70")
A("v_lshlrev_b32 v8, 3, v1")
A("s_lshl_b32 s28, s2, 8")
A(f"s_add_u32 s28, s28, {WS_MODT}")
A(f"buffer_store_dwordx2 v[44:45], v8, s[8:11], s28 offen sc0 sc1")
exec_all()
A("s_branch .Lp1_done")
A.label(".Lp1_nc")
desentinel(44, 8)
A("s_lshl_b32 s28, s2, 7")
A(f"buffer_store_dword v44, v3, s[8:11], s28 offen offset:{WS_MOD} sc0 sc1")
exec_all()
A("s_branch .Lp1_done")
A.label(".Lp1_q")
A("s_waitcnt vmcnt(10)")
for p in range(10):
    A(f"v_lshlrev_b32 v{28+p}, 16, v{28+p}")
    A(f"v_lshlrev_b32 v{16+p}, 16, v{16+p}")
A("v_add_f32 v8, v28, v29")
for p in range(2, 10):
    A(f"v_add_f32 v8, v8, v{28+p}")
wave_reduce(8, "v_add_f32")
A("v_mul_f32 v8, 0x3acccccd, v8")
A("v_sub_f32 v10, v28, v8")
A("v_mul_f32 v9, v10, v10")
for p in range(1, 10):
    A(f"v_sub_f32 v10, v{28+p}, v8")
    A("v_fma_f32 v9, v10, v10, v9")
wave_reduce(9, "v_add_f32")
A("v_mul_f32 v9, 0x3acccccd, v9")
bf16r(8, 10); bf16r(9, 10)
A("v_add_f32 v9, 0x3727c5ac, v9")
bf16r(9, 10)
A("v_sqrt_f32 v9, v9")
A("s_nop 0")
bf16r(9, 10)
for p in range(10):
    d = 16 + p
    A(f"v_sub_f32 v{d}, v{d}, v8")
    bf16r(d, 10)
    A(f"v_mov_b32 v11, v9")
    fdiv(d, d, 11, 12, 13)
    bf16r(d, 10)
A.label(".Lp1_done")
stamp(3)
A("s_cmp_ge_u32 s2, 64")
A("s_cbranch_scc1 .Lp2_q")
A.label(".Lp2_none")
A("s_branch .Lp2_done")
A.label(".Lp2_q")
A(f"v_mov_b32 v12, {MFLAG}")
A("s_cmp_lg_u32 s27, 0")
A("s_cbranch_scc1 .Lm_wait")
stamp(4)
A("v_lshlrev_b32 v13, 4, v1")
A(f"s_mov_b32 s29, {WS_MODT}")
def iss():
    for i in range(10):
        A(f"buffer_load_dwordx4 v[{144+4*i}:{147+4*i}], v13, s[8:11], s29 offen offset:{1024*i} sc1" if i < 4 else f"buffer_load_dwordx4 v[{144+4*i}:{147+4*i}], v13, s[8:11], 0 offen offset:{WS_MODT + 1024*i} sc1")
poll_tagged(iss, [145 + 2*j for j in range(20)], 53)
A("v_lshlrev_b32 v13, 3, v1")
A(f"v_add_u32 v13, {MODL}, v13")
for i in range(10):
    A(f"v_mov_b32 v{145+4*i}, v{146+4*i}")
    A(f"ds_write_b64 v13, v[{144+4*i}:{145+4*i}] offset:{512*i}")
A("s_waitcnt lgkmcnt(0)")
A("v_mov_b32 v13, 1")
A("ds_write_b32 v12, v13")
A.label(".Lm_wait")
A("ds_read_b32 v13, v12")
A("s_waitcnt lgkmcnt(0)")
A("v_readfirstlane_b32 s28, v13")
A("s_nop 0")
A("s_cmp_eq_u32 s28, 1")
A("s_cbranch_scc1 .Lm_ok")
A("s_sleep 1")
A("s_branch .Lm_wait")
A.label(".Lm_ok")
stamp(5)
A(f"v_add_u32 v13, {MODL}, v14")
for p in range(10):
    A(f"ds_read_b32 v{144+p}, v13 offset:{64*p}")
    A(f"ds_read_b32 v{154+p}, v13 offset:{2560 + 64*p}")
A("s_waitcnt vmcnt(0) lgkmcnt(0)")
for p in range(10):
    d = 16 + p
    A(f"v_add_f32 v{154+p}, 1.0, v{154+p}")
    bf16r(154+p, 10)
    A(f"v_mul_f32 v{d}, v{d}, v{154+p}")
    bf16r(d, 10)
    A(f"v_add_f32 v{d}, v{d}, v{144+p}")
    bf16r(d, 10)
job_partial(104, PRO_RED + 512)
aux_arrive(1)
A("s_cmp_lg_u32 s27, 0")
A("s_cbranch_scc1 .Lp2_done")
aux_wait(1)
job_final(PRO_RED + 512, None)
A("s_nop 1")
A("v_mov_b32_dpp v45, v44 quad_perm:[1,0,3,2] row_mask:0xf bank_mask:0xf")
A("v_cvt_pk_bf16_f32 v44, v44, v45")
A("v_mov_b32 v45, s70")
A("s_sub_u32 s28, s2, 64")
A("s_lshl_b32 s28, s28, 7")
A(f"s_add_u32 s28, s28, {WS_QT}")
A("s_mov_b32 exec_lo, 0x55555555")
A("s_mov_b32 exec_hi, 0")
A("buffer_store_dwordx2 v[44:45], v3, s[8:11], s28 offen sc0 sc1")
exec_all()
A.label(".Lp2_done")
A("s_setprio 0")
A("s_sub_u32 s28, s2, 64")
A("s_cmp_ge_u32 s28, 56")
A("s_cbranch_scc1 .Lp3_done")
for p in range(10):
    A(f"buffer_load_ushort v{16+p}, v7, s[48:51], 0 offen offset:{32*p}")
A("v_mul_u32_u24 v8, 7680, v6")
A("v_lshl_add_u32 v8, v5, 4, v8")
A("s_lshl_b32 s28, s2, 6")
for p in range(10):
    A(f"buffer_load_dwordx4 v[{64+4*p}:{67+4*p}], v8, s[52:55], s28 offen")
    A(f"s_add_u32 s28, s28, {16*7680}")
A("s_waitcnt vmcnt(10)")
silu_c()
A("s_waitcnt vmcnt(0)")
job_partial(64, PRO_RED)
aux_arrive(2)
A("s_cmp_lg_u32 s27, 0")
A("s_cbranch_scc1 .Lp3_done")
aux_wait(2)
job_final(PRO_RED, None)
bf16r(44, 8)
desentinel(44, 8)
A("s_lshl_b32 s28, s2, 7")
A("s_mov_b64 exec, 0xffffffff")
A(f"buffer_store_dword v44, v3, s[8:11], s28 offen offset:{WS_MOD} sc0 sc1")
exec_all()
A.label(".Lp3_done")
A("s_setprio 0")
stamp(6)
A("s_cmp_ge_u32 s2, 160")
A("s_cbranch_scc1 .Lpre_t3")
mk_srd(60, 80, 6144*640*2)
A("s_mul_hi_u32 s30, s2, 0x1999999a")
A("s_mul_i32 s31, s30, 10")
A("s_sub_u32 s31, s2, s31")
A("s_mul_i32 s28, s30, 491520")
A("s_lshl_b32 s31, s31, 7")
A("s_add_u32 s28, s28, s31")
A(f"s_mul_i32 s31, s27, {96*1280}")
A("s_add_u32 s28, s28, s31")
A("v_lshrrev_b32 v8, 3, v1")
A("v_mul_u32_u24 v8, 1280, v8")
A("v_and_b32 v9, 7, v1")
A("v_lshl_add_u32 v8, v9, 4, v8")
for p in range(12):
    A(f"buffer_load_dwordx4 v[{64+4*p}:{67+4*p}], v8, s[60:63], s28 offen")
    A(f"s_add_u32 s28, s28, {8*1280}")
A("s_branch .Laux_wait")
A.label(".Lpre_t3")
A("s_cmp_ge_u32 s2, 208")
A("s_cbranch_scc1 .Lpre_t4")
mk_srd(60, 84, 640*1536*2)
mk_srd(64, 86, 640*1536*2)
A("s_sub_u32 s28, s2, 160")
A("s_lshl_b32 s28, s28, 6")
A("v_mul_u32_u24 v8, 3072, v6")
A("v_lshl_add_u32 v8, v5, 4, v8")
for p in range(10):
    A(f"buffer_load_dwordx4 v[{64+4*p}:{67+4*p}], v8, s[60:63], s28 offen")
    A(f"buffer_load_dwordx4 v[{104+4*p}:{107+4*p}], v8, s[64:67], s28 offen")
    A(f"s_add_u32 s28, s28, {16*3072}")
poll_counter(128, 256, 52, 53)
def iss():
    A(f"s_mov_b32 s29, {WS_MOD + 2560*3}")
    for p in range(10):
        A(f"buffer_load_dword v{144+p}, v14, s[8:11], s29 offen offset:{64*p} sc1")
    A(f"s_mov_b32 s29, {WS_MOD + 2560*4}")
    for p in range(10):
        A(f"buffer_load_dword v{154+p}, v14, s[8:11], s29 offen offset:{64*p} sc1")
poll_loop(iss, list(range(144, 164)), 53)
for p in range(10):
    A(f"v_add_f32 v{154+p}, 1.0, v{154+p}")
    bf16r(154+p, 10)
A("s_branch .Laux_wait")
A.label(".Lpre_t4")
A("s_cmp_ge_u32 s2, 248")
A("s_cbranch_scc1 .Laux_wait")
mk_srd(60, 88, 1536*640*2)
A("s_sub_u32 s28, s2, 208")
A("s_lshl_b32 s28, s28, 5")
A("s_mul_i32 s31, s27, 491520")
A("s_add_u32 s28, s28, s31")
A("v_lshrrev_b32 v8, 1, v1")
A("v_mul_u32_u24 v8, 1280, v8")
A("v_and_b32 v9, 1, v1")
A("v_lshl_add_u32 v8, v9, 4, v8")
for p in range(12):
    A(f"buffer_load_dwordx4 v[{64+4*p}:{67+4*p}], v8, s[60:63], s28 offen")
    A(f"s_add_u32 s28, s28, {32*1280}")
A.label(".Laux_wait")
if FLEX:
    A("s_cmp_lg_u32 s27, 0")
    A("s_cbranch_scc1 .Lnobias")
    A("s_xor_b32 s28, s2, 1")
    A("s_lshl_b32 s28, s28, 3")
    A(f"s_add_u32 s29, s28, {WS_XP}")
    def iss():
        A("buffer_load_dwordx2 v[10:11], v52, s[8:11], s29 offen sc1")
    poll_tagged(iss, [11], 12)
    A("v_readfirstlane_b32 s28, v10")
    A("s_nop 0")
    A("s_and_b32 s29, s2, 1")
    A("s_cmp_eq_u32 s29, 0")
    A("s_cselect_b32 s30, s28, s69")
    A("s_cselect_b32 s31, s69, s28")
    A("s_sub_u32 s30, s30, s31")
    A("v_mov_b32 v10, s30")
    A(f"v_mov_b32 v11, {BIASW}")
    A("ds_write_b32 v11, v10")
    A.label(".Lnobias")
poll_counter(128, 256, 52, 53)
if POOL and not FLEX:
    A("s_cmp_lg_u32 s27, 0")
    A("s_cbranch_scc1 .Lfeed_done")
    A("s_and_b32 s54, s25, 3")
    A("s_lshl_b32 s54, s54, 6")
    A("s_lshr_b32 s55, s25, 2")
    A("s_lshl_b32 s55, s55, 2")
    A("s_add_u32 s54, s54, s55")
    A("s_add_u32 s54, s54, 16")
    A(f"v_mov_b32 v8, {PQ}")
    A("s_mov_b32 s44, 0")
    A("s_mov_b32 s47, 0")
    A("s_mov_b32 s48, 0")
    A.label(".Lfeed")
    A("ds_read_b32 v9, v8")
    A("s_waitcnt lgkmcnt(0)")
    A("v_readfirstlane_b32 s45, v9")
    A("s_nop 0")
    A(f"s_add_u32 s45, s45, {BATCH}")
    A("s_cmp_le_u32 s45, s44")
    A("s_cbranch_scc0 .Lfeed_get")
    A("s_sleep 4")
    A("s_branch .Lfeed")
    A.label(".Lfeed_get")
    A("s_sub_u32 s49, s44, s47")
    A(f"s_cmp_ge_u32 s49, {4*(CAP-S_STATIC) - BATCH}")
    A("s_cbranch_scc1 .Lfeed_fin")
    A(f"v_mov_b32 v10, {BATCH}")
    A("s_mov_b64 exec, 1")
    A("buffer_atomic_add v10, v52, s[12:15], s54 offen sc0")
    exec_all()
    A("s_waitcnt vmcnt(0)")
    A("v_readfirstlane_b32 s46, v10")
    A("s_nop 0")
    A(f"s_cmp_ge_u32 s46, {2*POOL}")
    A("s_cbranch_scc1 .Lfeed_fin")
    A(f"s_cmp_ge_u32 s46, {POOL}")
    A("s_cselect_b32 s49, 1, 0")
    A("s_cmp_eq_u32 s49, s48")
    A("s_cbranch_scc1 .Lfeed_same")
    A("s_mov_b32 s48, s49")
    A("s_mov_b32 s47, s44")
    A.label(".Lfeed_same")
    A("v_add_u32 v10, s46, v1")
    A("v_add_u32 v11, s44, v1")
    A("v_and_b32 v11, 31, v11")
    A("v_lshlrev_b32 v11, 2, v11")
    A(f"v_add_u32 v11, {PQE}, v11")
    A(f"s_mov_b64 exec, {(1<<BATCH)-1}")
    A("ds_write_b32 v11, v10")
    exec_all()
    A("s_waitcnt lgkmcnt(0)")
    A(f"s_add_u32 s44, s44, {BATCH}")
    A("v_mov_b32 v10, s44")
    A("ds_write_b32 v8, v10 offset:4")
    A("s_branch .Lfeed")
    A.label(".Lfeed_fin")
    A("v_mov_b32 v10, 1")
    A("ds_write_b32 v8, v10 offset:8")
    A.label(".Lfeed_done")
A("s_waitcnt vmcnt(0) lgkmcnt(0)")
A("s_branch .Ltail")

A.label(".Lstream")
A("s_barrier")
mk_srd(4, 74, KV_BYTES)
stamp(0)
if os.environ.get('REMAP'):
    A("s_lshr_b32 s27, s26, 1")
    A("s_and_b32 s28, s26, 1")
    A("s_lshl_b32 s28, s28, 3")
    A("s_or_b32 s27, s27, s28")
    A("s_lshl_b32 s27, s27, 2")
else:
    A("s_lshl_b32 s27, s26, 2")
A("s_add_u32 s27, s27, s20")
A(f"s_mul_i32 s24, s25, {2*HEADB}")
A(f"s_mul_i32 s23, s20, {RING}")
A("s_mov_b32 s22, 0")
A("s_mov_b32 s21, 0")
A("s_mov_b32 s67, 0")
A(f"s_mov_b32 s68, {6-int(os.environ.get('LOOK','6'))}")
A(f"s_mul_i32 s32, s20, {SCW}")
A(f"s_add_u32 s32, s32, {LDS_SC}")
A("s_and_b32 s54, s25, 3")
A("s_lshl_b32 s54, s54, 6")
A("s_lshr_b32 s55, s25, 2")
A("s_lshl_b32 s55, s55, 2")
A("s_add_u32 s54, s54, s55")
A("s_add_u32 s54, s54, 16")
A("s_mov_b32 s44, 0")
A("s_mov_b32 s45, 0")
A("s_mov_b32 s46, -2")
A("s_mov_b32 s49, 0x7fffffff")
A("s_mov_b32 s47, 0")
A("s_mov_b32 s48, 0")
A("v_mov_b32 v52, 0")
A("v_mov_b32 v63, 0")
for i in range(3):
    A(f"v_add_u32 v{2+i}, {64*i}, v1")
    A(f"v_mul_u32_u24 v{2+i}, 2731, v{2+i}")
    A(f"v_lshrrev_b32 v{2+i}, 16, v{2+i}")
    A(f"v_and_b32 v{2+i}, 6, v{2+i}")
    A(f"v_lshlrev_b32 v{2+i}, 4, v{2+i}")
    A(f"v_lshlrev_b32 v5, 4, v1")
    A(f"v_xor_b32 v{2+i}, v{2+i}, v5")

def issue_tile(sd, so, tile):
    A(f"s_cmp_lt_u32 s{sd}, 1024")
    A("s_cselect_b32 s4, s16, s18")
    A("s_cselect_b32 s5, s17, s19")
    A(f"s_add_u32 s29, s{so}, {6144*tile}")
    A("s_add_u32 m0, s23, s22")
    A("s_add_u32 s30, s29, 3072")
    for i in range(3):
        A(f"buffer_load_dwordx4 v{2+i}, s[4:7], s29 offen offset:{1024*i} nt lds")
    A("s_add_u32 m0, m0, 3072")
    A("s_nop 0")
    for i in range(3):
        A(f"buffer_load_dwordx4 v{2+i}, s[4:7], s30 offen offset:{1024*i} nt lds")
    A("s_add_u32 s22, s22, 6144")
    A(f"s_cmp_eq_u32 s22, {RING}")
    A("s_cselect_b32 s22, 0, s22")

def take_ticket(t):
    A(f"v_mov_b32 v62, {PQ}")
    A("v_mov_b32 v59, 1")
    A("s_mov_b64 exec, 1")
    A("ds_add_rtn_u32 v59, v62, v59")
    exec_all()
    A("s_waitcnt lgkmcnt(0)")
    A("v_readfirstlane_b32 s31, v59")
    A.label(f".Lt_spin{t}")
    A("ds_read_b64 v[58:59], v62 offset:4")
    A("s_waitcnt lgkmcnt(0)")
    A("v_readfirstlane_b32 s28, v58")
    A("v_readfirstlane_b32 s29, v59")
    A("s_nop 0")
    A("s_cmp_lt_u32 s31, s28")
    A(f"s_cbranch_scc1 .Lt_ok{t}")
    A("s_cmp_lg_u32 s29, 0")
    A(f"s_cbranch_scc1 .Lt_none{t}")
    A("s_sleep 1")
    A(f"s_branch .Lt_spin{t}")
    A.label(f".Lt_none{t}")
    A("s_mov_b32 s46, 0x7fffffff")
    A(f"s_branch .Lt_done{t}")
    A.label(f".Lt_ok{t}")
    A("s_and_b32 s31, s31, 31")
    A("s_lshl_b32 s31, s31, 2")
    A(f"s_add_u32 s31, s31, {PQE}")
    A("v_mov_b32 v59, s31")
    A("ds_read_b32 v59, v59")
    A("s_waitcnt lgkmcnt(0)")
    A("v_readfirstlane_b32 s46, v59")
    A("s_nop 0")
    A.label(f".Lt_done{t}")

GEN = [0]
def gen_next(sd, so):
    GEN[0] += 1; t = GEN[0]
    A.label(f".Lg_top{t}")
    A("s_cmp_ge_u32 s44, 2")
    A(f"s_cbranch_scc1 .Lg_v{t}")
    A(f"s_cmp_lt_u32 s45, {S_STATIC}")
    A(f"s_cbranch_scc1 .Lg_static{t}")
    if FLEX:
        A("s_cmp_lg_u32 s49, 0x7fffffff")
        A(f"s_cbranch_scc1 .Lg_bk{t}")
        A(f"v_mov_b32 v62, {BIASW}")
        A.label(f".Lg_bs{t}")
        A("ds_read_b32 v59, v62")
        A("s_waitcnt lgkmcnt(0)")
        A("v_readfirstlane_b32 s49, v59")
        A("s_nop 0")
        A("s_cmp_eq_u32 s49, 0x7fffffff")
        A(f"s_cbranch_scc0 .Lg_bk{t}")
        A("s_sleep 1")
        A(f"s_branch .Lg_bs{t}")
        A.label(f".Lg_bk{t}")
        A("s_cmp_eq_u32 s44, 0")
        A(f"s_cselect_b32 s28, {BA}, {BB}")
        A("s_mul_i32 s28, s28, s49")
        A("s_add_u32 s28, s28, 4")
        A("s_and_b32 s29, s2, 1")
        A("s_cmp_eq_u32 s29, 0")
        A("s_cselect_b32 s29, 0, s28")
        A("s_cselect_b32 s30, s28, 8")
        A("s_sub_u32 s28, s45, 7")
        A("s_lshl_b32 s28, s28, 2")
        A("s_add_u32 s28, s28, s20")
        A("s_add_u32 s28, s28, s29")
        A("s_cmp_ge_u32 s28, s30")
        A(f"s_cbranch_scc1 .Lg_next{t}")
        A("s_add_u32 s45, s45, 1")
        A("s_lshr_b32 s29, s26, 1")
        A("s_lshl_b32 s29, s29, 3")
        A("s_add_u32 s28, s28, s29")
        A("s_add_u32 s28, s28, 448")
        A(f"s_branch .Lg_rec{t}")
    elif POOL:
        A("s_cmp_eq_u32 s44, 0")
        A("s_cselect_b32 s29, s47, s48")
        A(f"s_cmp_ge_u32 s29, {CAP}")
        A(f"s_cbranch_scc1 .Lg_next{t}")
        A("s_cmp_lg_u32 s46, -2")
        A(f"s_cbranch_scc1 .Lg_have{t}")
        take_ticket(t)
        A.label(f".Lg_have{t}")
        A(f"s_mul_i32 s28, s44, {POOL}")
        A("s_sub_u32 s28, s46, s28")
        A(f"s_cmp_ge_u32 s28, {POOL}")
        A(f"s_cbranch_scc1 .Lg_next{t}")
        A(f"s_add_u32 s28, s28, {64*S_STATIC}")
        A("s_mov_b32 s46, -2")
        A(f"s_branch .Lg_rec{t}")
    A.label(f".Lg_next{t}")
    A("s_add_u32 s44, s44, 1")
    A("s_mov_b32 s45, 0")
    A(f"s_branch .Lg_top{t}")
    A.label(f".Lg_static{t}")
    A(f"s_mul_i32 s28, s27, {S_STATIC}")
    A("s_add_u32 s28, s28, s45")
    A("s_add_u32 s45, s45, 1")
    A.label(f".Lg_rec{t}")
    A("s_cmp_eq_u32 s44, 0")
    A("s_cselect_b32 s29, s47, s48")
    A("s_lshl_b32 s30, s44, 4")
    A("s_add_u32 s30, s30, s29")
    A("s_add_u32 s29, s29, 1")
    A("s_cmp_eq_u32 s44, 0")
    A("s_cselect_b32 s47, s29, s47")
    A("s_cselect_b32 s48, s48, s29")
    A("s_mov_b32 m0, s30")
    A("s_nop 0")
    A("v_writelane_b32 v63, s28, m0")
    A(f"s_branch .Lg_emit{t}")
    A.label(f".Lg_v{t}")
    A("s_cmp_ge_u32 s44, 4")
    A(f"s_cbranch_scc1 .Lg_end{t}")
    A("s_cmp_eq_u32 s44, 2")
    A("s_cselect_b32 s29, s47, s48")
    A("s_cmp_lt_u32 s45, s29")
    A(f"s_cbranch_scc1 .Lg_rep{t}")
    A("s_add_u32 s44, s44, 1")
    A("s_mov_b32 s45, 0")
    A(f"s_branch .Lg_v{t}")
    A.label(f".Lg_rep{t}")
    A("s_sub_u32 s30, s44, 2")
    A("s_lshl_b32 s30, s30, 4")
    A("s_add_u32 s30, s30, s45")
    A("s_add_u32 s45, s45, 1")
    A("s_nop 1")
    A("v_readlane_b32 s28, v63, s30")
    A.label(f".Lg_emit{t}")
    A(f"s_lshl_b32 s29, s44, 9")
    A(f"s_or_b32 s{sd}, s29, s28")
    A("s_and_b32 s29, s44, 1")
    A(f"s_mul_i32 s29, s29, {HEADB}")
    A("s_mul_i32 s28, s28, 24576")
    A("s_add_u32 s28, s28, s29")
    A(f"s_add_u32 s{so}, s28, s24")
    A(f"s_branch .Lg_out{t}")
    A.label(f".Lg_end{t}")
    A(f"s_mov_b32 s{sd}, -1")
    A(f"s_mov_b32 s{so}, 0x80000000")
    A.label(f".Lg_out{t}")

def do_fill():
    gen_next(60, 63)
    gen_next(61, 64)
    for t in range(6):
        if t >= FILLW:
            A(f"s_waitcnt vmcnt({6*(FILLW-1)})")
        if t < 4: issue_tile(60, 63, t)
        else: issue_tile(61, 64, t-4)
    stamp(9)
GATE = os.environ.get('GATE', 'a')
if GATE == 'a':
    A("s_cmp_ge_u32 s2, 40")
    A("s_cbranch_scc1 .Lnogate")
    A(f"v_mov_b32 v53, {LDS_MISC + 1024 + 12}")
    A("s_mov_b32 s31, 4")
elif GATE == 'm':
    A("s_cmp_ge_u32 s2, 64")
    A(f"s_mov_b32 s29, {MFLAG}")
    A(f"s_cselect_b32 s30, s29, {LDS_MISC + 1024 + 12}")
    A("s_cselect_b32 s31, 1, 4")
    A("v_mov_b32 v53, s30")
elif GATE == 'h':
    A("s_cmp_ge_u32 s2, 64")
    A("s_cbranch_scc1 .Lnogate")
    A(f"v_mov_b32 v53, {LDS_MISC + 1024 + 12}")
    A("s_mov_b32 s31, 4")
A.label(".Lgate")
A("ds_read_b32 v54, v53")
A("s_waitcnt lgkmcnt(0)")
A("v_readfirstlane_b32 s28, v54")
A("s_nop 0")
A("s_cmp_ge_u32 s28, s31")
A("s_cbranch_scc1 .Lnogate")
A("s_sleep 1")
A("s_branch .Lgate")
A.label(".Lnogate")
do_fill()
A("v_lshrrev_b32 v6, 4, v1")
A("v_and_b32 v7, 15, v1")
A("v_lshlrev_b32 v8, 4, v6")
A("v_and_b32 v9, 6, v7")
A("v_xor_b32 v10, v6, v9")
A("v_xor_b32 v11, 4, v10")
A("v_mul_u32_u24 v12, 384, v7")
A("v_add_u32 v12, s23, v12")
A("v_lshl_add_u32 v10, v10, 4, v12")
A("v_lshl_add_u32 v11, v11, 4, v12")
A("v_bfe_u32 v40, v1, 2, 2")
A("v_and_b32 v41, 3, v1")
A("v_and_b32 v42, 1, v6")
A("v_lshlrev_b32 v42, 1, v42")
A("v_lshrrev_b32 v43, 1, v40")
A("v_or_b32 v42, v42, v43")
A("v_lshl_add_u32 v43, v6, 2, v40")
A("v_mul_u32_u24 v43, 384, v43")
A("v_lshl_add_u32 v43, v41, 3, v43")
A("v_add_u32 v43, s23, v43")
for bb in range(4):
    A(f"v_xor_b32 v44, {bb}, v42")
    A(f"v_lshl_add_u32 v{12+bb}, v44, 5, v43")
stamp(1)
A(f"v_mov_b32 v53, {QFLAG}")
A("s_cmp_lg_u32 s20, 0")
A("s_cbranch_scc1 .Lq_wait")
get_nonce(52, 54)
stamp(2)
A("s_mul_i32 s31, s25, 1536")
A(f"s_add_u32 s31, s31, {WS_QT}")
A("v_lshlrev_b32 v55, 4, v1")
A("v_min_u32 v56, 496, v55")
def issue_q():
    A(f"buffer_load_dwordx4 v[16:19], v55, s[8:11], s31 offen sc1")
    A(f"buffer_load_dwordx4 v[20:23], v56, s[8:11], s31 offen offset:1024 sc1")
poll_tagged(issue_q, [17, 19, 21, 23], 44)
A("v_mov_b32 v17, v18")
A("v_mov_b32 v21, v22")
A("v_lshrrev_b32 v55, 1, v55")
A("v_lshrrev_b32 v56, 1, v56")
A(f"v_add_u32 v55, {QLDS}, v55")
A(f"v_add_u32 v56, {QLDS + 512}, v56")
A("ds_write_b64 v55, v[16:17]")
A("ds_write_b64 v56, v[20:21]")
A("s_waitcnt lgkmcnt(0)")
A("v_mov_b32 v54, 1")
A("ds_write_b32 v53, v54")
A.label(".Lq_wait")
A("ds_read_b32 v54, v53")
A("s_waitcnt lgkmcnt(0)")
A("v_readfirstlane_b32 s28, v54")
A("s_nop 0")
A("s_cmp_eq_u32 s28, 1")
A("s_cbranch_scc1 .Lq_ok")
A("s_sleep 1")
A("s_branch .Lq_wait")
A.label(".Lq_ok")
A(f"v_add_u32 v55, {QLDS}, v8")
for st in range(6):
    A(f"ds_read_b128 v[{16+4*st}:{19+4*st}], v55 offset:{64*st}")
for st in range(6):
    A(f"ds_read_b128 v[{176+4*st}:{179+4*st}], v55 offset:{384+64*st}")
A("s_waitcnt lgkmcnt(0)")
QA = 64; KB = 16; ACC = 40
def build_qa(src):
    for t in range(4):
        A(f"v_cmp_eq_u32 vcc, {4*t}, v7")
        A("s_nop 1")
        for r in range(24):
            A(f"v_cndmask_b32 v{QA+24*t+r}, 0, v{src+r}, vcc")

OACC = 64; VB = 112
LOOK = int(os.environ.get('LOOK', '6'))
def adv_rd():
    A("s_add_u32 s21, s21, 6144")
    A(f"s_cmp_eq_u32 s21, {RING}")
    A("s_cselect_b32 s21, 0, s21")
def mid_issue(j):
    if j == 2:
        gen_next(62, 65)
    tt = j + LOOK
    sk = None
    if LOOK < 6:
        sk = L("sk")
        A(f"s_cmp_lt_u32 s67, {6-LOOK}")
        A("s_addc_u32 s67, s67, 0")
        A(f"s_cbranch_scc1 {sk}") if False else None
    if LOOK < 6:
        A(f"s_cmp_le_u32 s67, {6-LOOK}")
        A(f"s_cselect_b32 s31, 1, 0")
        A("s_cmp_eq_u32 s68, 0")
        A(f"s_cbranch_scc1 {sk}_go")
        A("s_sub_u32 s68, s68, 1")
        A(f"s_branch {sk}")
        A.label(f"{sk}_go")
    if tt < 4: issue_tile(60, 63, tt)
    elif tt < 8: issue_tile(61, 64, tt - 4)
    else: issue_tile(62, 65, tt - 8)
    if sk: A.label(sk)
def rotate():
    A("s_mov_b32 s60, s61"); A("s_mov_b32 s63, s64")
    A("s_mov_b32 s61, s62"); A("s_mov_b32 s64, s65")
    A("s_add_u32 s66, s66, 1")

def issue_ml(hsel):
    A(f"buffer_load_dword v57, v52, s[12:15], 0 offen offset:128 sc1")
    A("s_lshl_b32 s35, s25, 10")
    A(f"s_add_u32 s35, s35, {WS_ML + 512*hsel}")
    A("v_lshlrev_b32 v56, 3, v1")
    A(f"buffer_load_dwordx2 v[50:51], v56, s[8:11], s35 offen sc1")

def kphase(hsel):
    lp = L("kloop")
    A("v_mov_b32 v54, 0xff800000")
    A("v_mov_b32 v45, 0")
    A("v_lshlrev_b32 v55, 1, v1")
    A(f"s_add_u32 s34, s32, {4*SCW*hsel}")
    A("v_add_u32 v55, s34, v55")
    A("s_mov_b32 s66, 0")
    A.label(lp)
    for t in range(4):
        A(f"s_waitcnt vmcnt({6*(LOOK-1)})")
        A("v_add_u32 v160, s21, v10")
        A("v_add_u32 v161, s21, v11")
        for st in range(6):
            A(f"ds_read_b128 v[{KB+4*st}:{KB+4*st+3}], v{160 + (st&1)} offset:{(st>>1)*128}")
        adv_rd()
        A("s_waitcnt lgkmcnt(0)")
        mid_issue(t)
        for st in range(6):
            c = "0" if (t == 0 and st == 0) else f"v[{ACC}:{ACC+3}]"
            A(f"v_mfma_f32_16x16x32_bf16 v[{ACC}:{ACC+3}], v[{QA+24*t+4*st}:{QA+24*t+4*st+3}], v[{KB+4*st}:{KB+4*st+3}], {c}")
    if hsel == 1:
        sk = L("skip")
        A(f"s_cmp_lg_u32 s66, {S_STATIC-3}")
        A(f"s_cbranch_scc1 {sk}")
        issue_ml(0)
        A.label(sk)
    A("s_nop 7")
    A("s_nop 1")
    A(f"v_cvt_pk_bf16_f32 v44, v{ACC}, v{ACC}")
    A("v_lshlrev_b32 v44, 16, v44")
    A(f"v_mul_f32 v44, {SCALE}, v44")
    A("v_cvt_pk_bf16_f32 v44, v44, v44")
    A("ds_write_b16 v55, v44")
    A("v_lshlrev_b32 v44, 16, v44")
    A("v_max_f32 v46, v54, v44")
    A("v_sub_f32 v47, v54, v46")
    A("v_sub_f32 v48, v44, v46")
    A(f"v_mul_f32 v47, {LOG2E}, v47")
    A(f"v_mul_f32 v48, {LOG2E}, v48")
    A("v_exp_f32 v47, v47")
    A("v_exp_f32 v48, v48")
    A("v_mov_b32 v54, v46")
    A("v_fma_f32 v45, v45, v47, v48")
    A("v_add_u32 v55, 128, v55")
    rotate()
    A("s_lshr_b32 s28, s60, 9")
    A(f"s_cmp_eq_u32 s28, {hsel}")
    A(f"s_cbranch_scc1 {lp}")
    A("v_mov_b32 v44, v54")
    wave_reduce(44, "v_max_f32")
    A("v_sub_f32 v47, v54, v44")
    A(f"v_mul_f32 v47, {LOG2E}, v47")
    A("v_exp_f32 v47, v47")
    A("s_nop 0")
    A("v_mul_f32 v45, v45, v47")
    wave_reduce(45, "v_add_f32")
    desentinel(44, 46); desentinel(45, 46)
    A("s_lshl_b32 s35, s25, 10")
    A("s_lshl_b32 s36, s27, 3")
    A("s_add_u32 s35, s35, s36")
    A(f"s_add_u32 s35, s35, {WS_ML + 512*hsel}")
    A("s_mov_b64 exec, 1")
    A(f"buffer_store_dwordx2 v[44:45], v52, s[8:11], s35 offen sc1")
    exec_all()

def vphase(hsel):
    ok = L("mlok"); slow = L("mlslow")
    if hsel == 1 and PREF:
        A("s_getpc_b64 s[28:29]")
        A(".Lpc_ref:")
        A("v_lshlrev_b32 v58, 4, v1")
        A("s_lshl_b32 s30, s20, 12")
        A("v_add_u32 v58, s30, v58")
        A("v_add_u32 v58, .Ltail-.Lpc_ref, v58")
        for i in range(4):
            A("v_min_u32 v59, .Lend-.Lpc_ref-12, v58")
            A("global_load_dwordx4 v[252:255], v59, s[28:29]")
            A("v_add_u32 v58, 1024, v58")
    A("v_cmp_gt_u32 vcc, 256, v57")
    A(f"s_cbranch_vccnz {slow}")
    A("v_max_u32 v53, v50, v51")
    A("v_cmp_eq_u32 vcc, -1, v53")
    A(f"s_cbranch_vccz {ok}")
    A.label(slow)
    poll_counter(128, 256, 52, 53)
    poll_loop(lambda: issue_ml(hsel), [50, 51], 53)
    A.label(ok)
    A("v_mov_b32 v44, v50")
    wave_reduce(44, "v_max_f32")
    A("v_sub_f32 v45, v50, v44")
    A(f"v_mul_f32 v45, {LOG2E}, v45")
    A("v_exp_f32 v45, v45")
    A("s_nop 0")
    A("v_mul_f32 v45, v45, v51")
    wave_reduce(45, "v_add_f32")
    A(f"s_add_u32 s34, s32, {4*SCW*hsel}")
    A("v_lshlrev_b32 v55, 1, v1")
    A("v_add_u32 v55, s34, v55")
    A("v_and_b32 v30, 31, v1")
    A("v_bfe_u32 v31, v30, 2, 2")
    A("v_lshlrev_b32 v31, 3, v31")
    A("v_bfe_u32 v32, v30, 4, 1")
    A("v_lshl_add_u32 v31, v32, 2, v31")
    A("v_and_b32 v32, 3, v30")
    A("v_add_u32 v31, v31, v32")
    A("v_lshlrev_b32 v31, 1, v31")
    A("v_lshrrev_b32 v32, 5, v1")
    A("v_lshl_add_u32 v31, v32, 6, v31")
    A("v_add_u32 v31, s34, v31")
    A("s_mov_b32 s66, 0")
    plp = L("ploop")
    A.label(plp)
    A("ds_read_u16 v47, v55")
    A("v_add_u32 v55, 128, v55")
    A("s_waitcnt lgkmcnt(0)")
    A("v_lshlrev_b32 v47, 16, v47")
    A("v_sub_f32 v47, v47, v44")
    A(f"v_mul_f32 v47, {LOG2E}, v47")
    A("v_exp_f32 v47, v47")
    A("v_mov_b32 v49, v45")
    fdiv(47, 47, 49, 56, 53)
    A("v_cvt_pk_bf16_f32 v47, v47, v47")
    A("ds_write_b16 v31, v47")
    A("v_add_u32 v31, 128, v31")
    A("s_add_u32 s66, s66, 1")
    A(f"s_cmp_lt_u32 s66, s{47+hsel}")
    A(f"s_cbranch_scc1 {plp}")
    A("v_lshlrev_b32 v55, 4, v6")
    A("v_add_u32 v55, s34, v55")
    for i in range(48):
        A(f"v_mov_b32 v{OACC+i}, 0")
    A("s_waitcnt lgkmcnt(0)")
    A("s_mov_b32 s66, 0")
    lp = L("vloop")
    A.label(lp)
    for step in range(2):
        A(f"ds_read_b128 v[20:23], v55 offset:{64*step}")
        for h in range(2):
            A(f"s_waitcnt vmcnt({6*(LOOK-1)})")
            for bb in range(4):
                A(f"v_add_u32 v{160+bb}, s21, v{12+bb}")
            for b in range(12):
                A(f"ds_read_b64_tr_b16 v[{VB+4*b+2*h}:{VB+4*b+2*h+1}], v{160+(b&3)} offset:{(b>>2)*128}")
            adv_rd()
            A("s_waitcnt lgkmcnt(0)")
            mid_issue(2*step + h)
        for b in range(12):
            A(f"v_mfma_f32_16x16x32_bf16 v[{OACC+4*b}:{OACC+4*b+3}], v[20:23], v[{VB+4*b}:{VB+4*b+3}], v[{OACC+4*b}:{OACC+4*b+3}]")
    if hsel == 0:
        sk = L("skip")
        A(f"s_cmp_lg_u32 s66, {S_STATIC-3}")
        A(f"s_cbranch_scc1 {sk}")
        issue_ml(1)
        A.label(sk)
    A("v_add_u32 v55, 128, v55")
    rotate()
    A("s_lshr_b32 s28, s60, 9")
    A(f"s_cmp_eq_u32 s28, {2+hsel}")
    A(f"s_cbranch_scc1 {lp}")
    A("s_nop 7")
    A("s_nop 1")
    A("v_lshlrev_b32 v56, 2, v1")
    A("v_add_u32 v56, s34, v56")
    A("s_mov_b64 exec, 0xffff")
    for b in range(12):
        A(f"ds_write_b32 v56, v{OACC+4*b} offset:{64*b}")
    exec_all()

if STAMP:
    A("s_getreg_b32 s69, hwreg(HW_REG_XCC_ID)")
    A("s_getreg_b32 s70, hwreg(HW_REG_HW_ID)") if False else A("s_mov_b32 s70, 0")
    sval(31, 69, 70)
stamp(3)
build_qa(16)
kphase(0)
stamp(4)
build_qa(176)
kphase(1)
stamp(5)
vphase(0)
stamp(6)
vphase(1)
stamp(7)
A("s_waitcnt vmcnt(0) lgkmcnt(0)")
A("s_branch .Ltail")

A.label(".Ltail")
A("s_barrier")
stamp(8)
A("v_lshlrev_b32 v3, 2, v1")
A("v_lshlrev_b32 v4, 2, v0")
A("v_mov_b32 v52, 0")
A("s_sub_u32 s27, s20, 4")
A("s_cmp_ge_u32 s20, 6")
A("s_cbranch_scc1 .Lt1_done")
A("v_cmp_le_u32 vcc, 192, v0")
A(f"v_mov_b32 v6, {4*SCW - 768}")
A("s_nop 0")
A("v_cndmask_b32 v5, 0, v6, vcc")
A("v_add_u32 v5, v5, v4")
A(f"v_add_u32 v5, {LDS_SC}, v5")
for w in range(4):
    A(f"ds_read_b32 v{20+w}, v5 offset:{SCW*w}")
A("s_waitcnt lgkmcnt(0)")
A("v_add_f32 v20, v20, v21")
A("v_add_f32 v22, v22, v23")
A("v_add_f32 v20, v20, v22")
desentinel(20, 24)
A("s_mul_i32 s28, s2, 1536")
A(f"s_add_u32 s28, s28, {WS_OP}")
A("buffer_store_dword v20, v4, s[8:11], s28 offen sc0 sc1")
A.label(".Lt1_done")
A("s_cmp_ge_u32 s2, 160")
A("s_cbranch_scc1 .Lt3")
A("s_mul_hi_u32 s30, s2, 0x1999999a")
A("s_cmp_ge_u32 s20, 6")
A("s_cbranch_scc1 .Lt2_b")
A("s_mul_i32 s28, s30, 24576")
A(f"s_add_u32 s28, s28, {WS_OP}")
def iss():
    for j in range(16):
        A(f"s_add_u32 s29, s28, {1536*j}")
        A(f"buffer_load_dword v{20+j}, v4, s[8:11], s29 offen sc1")
poll_loop(iss, list(range(20, 36)), 53)
for j in range(1, 16):
    A(f"v_add_f32 v20, v20, v{20+j}")
bf16r(20, 21)
A("ds_write_b32 v4, v20 offset:0")
A("s_waitcnt lgkmcnt(0)")
A.label(".Lt2_b")
stamp(9)
A("s_barrier")
A("s_cmp_lt_u32 s20, 4")
A("s_cbranch_scc1 .Lt2_c")
A("v_lshrrev_b32 v8, 3, v1")
A("s_mul_i32 s28, s27, 96")
A("v_add_u32 v8, s28, v8")
A("v_lshlrev_b32 v8, 2, v8")
for p in range(12):
    A(f"ds_read_b32 v{20+p}, v8 offset:{32*p}")
A("s_waitcnt lgkmcnt(0)")
gemv_fma8(64, 12, 40, 20, 8)
reduce8_rg8(40)
part_addr(8, 3, 9, 4096)
exec_low(3)
A("ds_write_b64 v8, v[40:41]")
exec_all()
A("s_waitcnt lgkmcnt(0)")
A.label(".Lt2_c")
A("s_barrier")
A("s_cmp_lg_u32 s20, 4")
A("s_cbranch_scc1 .Lend")
for w in range(4):
    A(f"ds_read_b32 v{20+w}, v3 offset:{4096 + 256*w}")
A("s_waitcnt lgkmcnt(0)")
A("v_add_f32 v20, v20, v21")
A("v_add_f32 v22, v22, v23")
A("v_add_f32 v20, v20, v22")
desentinel(20, 8)
A("s_lshl_b32 s28, s2, 8")
A(f"s_add_u32 s28, s28, {WS_AP}")
A("buffer_store_dword v20, v3, s[8:11], s28 offen sc0 sc1")
stamp(10)
A("s_branch .Lend")

A.label(".Lt3")
A("s_cmp_ge_u32 s2, 208")
A("s_cbranch_scc1 .Lt4")
mk_srd(44, 72, 1280)
A("v_lshlrev_b32 v2, 1, v0")
A("buffer_load_ushort v10, v2, s[44:47], 0 offen")
A("buffer_load_ushort v11, v2, s[44:47], 0 offen offset:1024")
A("v_cmp_gt_u32 vcc, 128, v0")
A("v_mov_b32 v6, 2048")
A("s_nop 0")
A("v_cndmask_b32 v5, 0, v6, vcc")
A("v_add_u32 v5, v5, v4")
def iss():
    A(f"s_mov_b32 s29, {WS_MOD + 2560*2}")
    A(f"buffer_load_dword v12, v4, s[8:11], s29 offen sc1")
    A(f"buffer_load_dword v13, v5, s[8:11], s29 offen sc1")
    for j in range(16):
        A(f"s_mov_b32 s29, {WS_AP + 2560*j}")
        A(f"buffer_load_dword v{20+j}, v4, s[8:11], s29 offen sc1")
        A(f"buffer_load_dword v{170+j}, v5, s[8:11], s29 offen sc1")
poll_loop(iss, [12, 13] + list(range(20, 36)) + list(range(170, 186)), 53)
stamp(11)
for j in range(1, 16):
    A(f"v_add_f32 v20, v20, v{20+j}")
    A(f"v_add_f32 v170, v170, v{170+j}")
A("v_mov_b32 v21, v170")
for i in range(2):
    a = 20 + i
    bf16r(a, 8)
    A(f"v_mul_f32 v{a}, v{a}, v{12+i}")
    bf16r(a, 8)
    A(f"v_lshlrev_b32 v{10+i}, 16, v{10+i}")
    A(f"v_add_f32 v{10+i}, v{10+i}, v{a}")
    bf16r(10+i, 8)
    A(f"ds_write_b32 v4, v{10+i} offset:{2048*i}")
A("s_waitcnt lgkmcnt(0)")
A("s_barrier")
A("s_cmp_lt_u32 s20, 4")
A("s_cbranch_scc1 .Lt3_c")
for p in range(10):
    A(f"ds_read_b32 v{28+p}, v3 offset:{256*p}")
A("v_lshrrev_b32 v8, 2, v1")
A("s_mul_i32 s28, s27, 160")
A("v_add_u32 v8, s28, v8")
A("v_lshlrev_b32 v8, 2, v8")
for p in range(10):
    A(f"ds_read_b32 v{16+p}, v8 offset:{64*p}")
A("s_waitcnt lgkmcnt(0)")
A("v_add_f32 v8, v28, v29")
for p in range(2, 10):
    A(f"v_add_f32 v8, v8, v{28+p}")
wave_reduce(8, "v_add_f32")
A("v_mul_f32 v8, 0x3acccccd, v8")
A("v_sub_f32 v10, v28, v8")
A("v_mul_f32 v9, v10, v10")
for p in range(1, 10):
    A(f"v_sub_f32 v10, v{28+p}, v8")
    A("v_fma_f32 v9, v10, v10, v9")
wave_reduce(9, "v_add_f32")
A("v_mul_f32 v9, 0x3acccccd, v9")
bf16r(8, 10); bf16r(9, 10)
A("v_add_f32 v9, 0x3727c5ac, v9")
bf16r(9, 10)
A("v_sqrt_f32 v9, v9")
A("s_nop 0")
bf16r(9, 10)
for p in range(10):
    d = 16 + p
    A(f"v_sub_f32 v{d}, v{d}, v8")
    bf16r(d, 10)
    A(f"v_mov_b32 v11, v9")
    fdiv(d, d, 11, 12, 13)
    bf16r(d, 10)
    A(f"v_mul_f32 v{d}, v{d}, v{154+p}")
    bf16r(d, 10)
    A(f"v_add_f32 v{d}, v{d}, v{144+p}")
    bf16r(d, 10)
gemv_fma8(64, 10, 40, 16, 8)
gemv_fma8(104, 10, 32, 16, 8)
reduce8_rg4(40); reduce8_rg4(32)
part_addr(8, 2, 9, 8192)
exec_low(2)
A("ds_write_b64 v8, v[40:41]")
A("ds_write_b64 v8, v[32:33] offset:512")
exec_all()
A("s_waitcnt lgkmcnt(0)")
A.label(".Lt3_c")
A("s_barrier")
A("s_cmp_lg_u32 s20, 4")
A("s_cbranch_scc1 .Lend")
for w in range(4):
    A(f"ds_read_b32 v{20+w}, v3 offset:{8192 + 128*w}")
    A(f"ds_read_b32 v{24+w}, v3 offset:{8192 + 512 + 128*w}")
A("s_waitcnt lgkmcnt(0)")
for b in (20, 24):
    A(f"v_add_f32 v{b}, v{b}, v{b+1}")
    A(f"v_add_f32 v{b+2}, v{b+2}, v{b+3}")
    A(f"v_add_f32 v{b}, v{b}, v{b+2}")
    bf16r(b, 8)
silu(20, 8)
bf16r(20, 8)
A("v_mul_f32 v20, v20, v24")
bf16r(20, 8)
desentinel(20, 8)
A("s_sub_u32 s28, s2, 160")
A("s_lshl_b32 s28, s28, 7")
A(f"s_add_u32 s28, s28, {WS_ACT}")
A("s_mov_b64 exec, 0xffffffff")
A("buffer_store_dword v20, v3, s[8:11], s28 offen sc0 sc1")
exec_all()
stamp(12)
A("s_branch .Lend")

A.label(".Lt4")
A("s_cmp_ge_u32 s2, 248")
A("s_cbranch_scc1 .Lend")
A("s_cmp_lt_u32 s20, 4")
A("s_cbranch_scc1 .Lt4_s")
mk_srd(44, 72, 1280)
A("s_sub_u32 s31, s2, 208")
A("s_lshl_b32 s31, s31, 4")
A("v_and_b32 v6, 15, v1")
A("v_add_u32 v6, s31, v6")
A("v_lshlrev_b32 v7, 1, v6")
A("v_lshlrev_b32 v6, 2, v6")
A("buffer_load_ushort v10, v7, s[44:47], 0 offen")
def iss():
    A(f"s_mov_b32 s29, {WS_MOD + 2560*2}")
    A(f"buffer_load_dword v12, v6, s[8:11], s29 offen sc1")
    A(f"s_mov_b32 s29, {WS_MOD + 2560*5}")
    A(f"buffer_load_dword v13, v6, s[8:11], s29 offen sc1")
    for j in range(16):
        A(f"s_mov_b32 s29, {WS_AP + 2560*j}")
        A(f"buffer_load_dword v{20+j}, v6, s[8:11], s29 offen sc1")
poll_loop(iss, [12, 13] + list(range(20, 36)), 53)
for j in range(1, 16):
    A(f"v_add_f32 v20, v20, v{20+j}")
bf16r(20, 8)
A("v_mul_f32 v20, v20, v12")
bf16r(20, 8)
A("v_lshlrev_b32 v10, 16, v10")
A("v_add_f32 v10, v10, v20")
bf16r(10, 8)
A("v_lshrrev_b32 v8, 1, v1")
A("s_mul_i32 s28, s27, 384")
A("v_add_u32 v8, s28, v8")
A("v_lshlrev_b32 v14, 2, v8")
A(f"s_mov_b32 s28, {WS_ACT}")
def iss():
    for p in range(12):
        A(f"buffer_load_dword v{20+p}, v14, s[8:11], s28 offen offset:{128*p} sc1")
poll_loop(iss, list(range(20, 32)), 53)
stamp(13)
gemv_fma8(64, 12, 40, 20, 8)
reduce8_rg2(40)
part_addr(8, 1, 9, 0)
exec_low(1)
A("ds_write_b64 v8, v[40:41]")
exec_all()
A("s_waitcnt lgkmcnt(0)")
A.label(".Lt4_s")
A("s_barrier")
A("s_cmp_lg_u32 s20, 4")
A("s_cbranch_scc1 .Lend")
A("v_and_b32 v8, 15, v1")
A("v_lshlrev_b32 v8, 2, v8")
for w in range(4):
    A(f"ds_read_b32 v{20+w}, v8 offset:{64*w}")
A("s_waitcnt lgkmcnt(0)")
A("v_add_f32 v20, v20, v21")
A("v_add_f32 v22, v22, v23")
A("v_add_f32 v20, v20, v22")
bf16r(20, 9)
A("v_mul_f32 v20, v20, v13")
bf16r(20, 9)
A("v_add_f32 v20, v20, v10")
A("v_cvt_pk_bf16_f32 v20, v20, v20")
mk_srd(68, 94, 1280)
A("s_mov_b64 exec, 0xffff")
A("buffer_store_short v20, v7, s[68:71], 0 offen")
exec_all()
stamp(14)
A.label(".Lend")
A("s_endpgm")

def fix_offsets(text):
    outl = []
    for line in text.split("\n"):
        m = re.match(r"^(\s*buffer_\w+ .*, s\[\d+:\d+\]), (\S+) offen offset:(\d+)(.*)$", line)
        if m and int(m.group(3)) >= 4096:
            off = int(m.group(3)); so = m.group(2)
            if so == "0":
                outl.append(f"    s_mov_b32 s100, {off}")
            else:
                outl.append(f"    s_add_u32 s100, {so}, {off}")
            outl.append(f"{m.group(1)}, s100 offen{m.group(4)}")
        else:
            outl.append(line)
    return "\n".join(outl)
body = fix_offsets(A.text())
launch = f"; @launch grid=(256,1,1) block=(512,1,1) lds={LDS_TOTAL}\n"
out = HEADER + launch + '.amdgcn_target "amdgcn-amd-amdhsa--gfx950"\n.text\n' + body + '.section .rodata,"a"\n.p2align 6\n' + kernel_desc(NAME, 256)
open(sys.argv[1], "w").write(out)
```

```python
import sys, struct, re
from asmlib import *

NS = int(sys.argv[2]) if len(sys.argv) > 2 else 6
FILLW = int(sys.argv[4]) if len(sys.argv) > 4 else 2
PREF = int(sys.argv[5]) if len(sys.argv) > 5 else 0
LATEFILL = FILLW == 0
if LATEFILL: FILLW = 6
NAME = "adaLN_cond__mha_block_cached__swiglu_ffn__decode_kernel"

WS_MOD = 0x0000
WS_Q   = 0x4000
WS_ML  = 0x8000
WS_OP  = 0x10000
WS_AP  = 0x70000
WS_ACT = 0x7A000
WS_MODT = 0xC000
WS_XP = 0xF000
WS_QT = 0x80000
WS_SIZE = 0x200000
KV_BYTES = 402653184
HEADB = 12582912
LOG2E = 0x3fb8aa3b
SCALE = 0x3d93cd3a
RING = NS * 6144
CAP = 14
SCW = CAP * 128
LDS_SC = 4 * RING
LDS_SCB = LDS_SC + 4 * SCW
LDS_MISC = LDS_SC + 8 * SCW
LDS_TOTAL = LDS_MISC + 2048
MODL = LDS_SCB
QLDS = LDS_SCB + 5120
QFLAG = LDS_SCB + 5888
MFLAG = LDS_SCB + 5892
import os
S_STATIC = int(os.environ.get('S_STATIC', '6'))
POOL = 512 - 64 * S_STATIC
POOLSH = max(POOL, 1).bit_length() - 1
PQ = LDS_MISC + 1024 + 16
PQE = LDS_MISC + 1280
FLEX = os.environ.get('FLEX', '1') == '1'
BA = int(os.environ.get('BA', '2')); BB = int(os.environ.get('BB', '1'))
BIASW = LDS_MISC + 1024 + 28
DAMP = float(os.environ.get('DAMP', '0.4'))
SA, SB = 7, 6
TML = LDS_MISC + 1024 + 32
FLW = LDS_MISC + 1024 + 48
WS_XT = 0xF800
BATCH = int(os.environ.get('BATCH', '4'))
assert LDS_TOTAL <= 163840
SPIN_LIMIT = 400000

A = Asm()
def L(p): return A.newlabel(p)
STAMP = len(sys.argv) > 3 and sys.argv[3] == "stamp"
WS_TS = 0x100000
def stamp(idx):
    if not STAMP: return
    A("s_memrealtime s[46:47]" if False else "s_memrealtime s[36:37]")
    A("s_waitcnt lgkmcnt(0)")
    A("v_mov_b32 v58, s36")
    A("v_mov_b32 v59, s37")
    A("v_mov_b32 v60, 0")
    A("s_lshl_b32 s36, s2, 3")
    A("s_add_u32 s36, s36, s20")
    A("s_lshl_b32 s36, s36, 8")
    A(f"s_add_u32 s36, s36, {WS_TS + 8*idx}")
    A("s_mov_b64 exec, 1")
    A("buffer_store_dwordx2 v[58:59], v60, s[8:11], s36 offen")
    A("s_mov_b64 exec, -1")

def sval(idx, sreg, sreg2):
    if not STAMP: return
    A(f"v_mov_b32 v58, s{sreg}")
    A(f"v_mov_b32 v59, s{sreg2}")
    A("v_mov_b32 v60, 0")
    A("s_lshl_b32 s36, s2, 3")
    A("s_add_u32 s36, s36, s20")
    A("s_lshl_b32 s36, s36, 8")
    A(f"s_add_u32 s36, s36, {WS_TS + 8*idx}")
    A("s_mov_b64 exec, 1")
    A("buffer_store_dwordx2 v[58:59], v60, s[8:11], s36 offen")
    A("s_mov_b64 exec, -1")

def bf16r(v, t):
    A(f"v_cvt_pk_bf16_f32 v{t}, v{v}, v{v}")
    A(f"v_lshlrev_b32 v{v}, 16, v{t}")

def row_reduce(vs, op):
    for ctl in ("quad_perm:[1,0,3,2]", "quad_perm:[2,3,0,1]", "row_half_mirror", "row_mirror"):
        if len(vs) < 3:
            A("s_nop 1")
        for v in vs:
            A(f"{op}_dpp v{v}, v{v}, v{v} {ctl} row_mask:0xf bank_mask:0xf")

def wave_reduce(v, op, s=40):
    row_reduce([v], op)
    A("s_nop 1")
    for i in range(4):
        A(f"v_readlane_b32 s{s+i}, v{v}, {16*i}")
    A("s_nop 1")
    A(f"v_mov_b32 v{v}, s{s}")
    for i in range(1, 4):
        A(f"{op} v{v}, s{s+i}, v{v}")

def fdiv(d, n, den, t0, t1):
    A(f"v_rcp_f32 v{t0}, v{den}")
    A("s_nop 0")
    A(f"v_mul_f32 v{t1}, v{n}, v{t0}")
    A(f"v_fma_f32 v{den}, -v{t1}, v{den}, v{n}")
    A(f"v_fma_f32 v{d}, v{den}, v{t0}, v{t1}")

def silu(v, t):
    A(f"v_mov_b32 v{t+3}, 0x200")
    A(f"v_mul_f32 v{t}, 0xbfb8aa3b, v{v}")
    A(f"v_exp_f32 v{t}, v{t}")
    A("s_nop 0")
    A(f"v_add_f32 v{t}, 1.0, v{t}")
    A(f"v_cmp_class_f32 vcc, v{t}, v{t+3}")
    A(f"v_rcp_f32 v{t+1}, v{t}")
    A("s_nop 0")
    A(f"v_mul_f32 v{t+2}, v{v}, v{t+1}")
    A(f"v_fma_f32 v{t}, -v{t+2}, v{t}, v{v}")
    A(f"v_fma_f32 v{v}, v{t}, v{t+1}, v{t+2}")
    A(f"v_cndmask_b32 v{v}, v{v}, v{t+2}, vcc")

def desentinel(v, t):
    A(f"v_mov_b32 v{t}, 0x7fc00000")
    A(f"v_cmp_eq_u32 vcc, -1, v{v}")
    A("s_nop 1")
    A(f"v_cndmask_b32 v{v}, v{v}, v{t}, vcc")

def poll_loop(issue, regs, vt, scnt=39):
    lp = L("poll"); done = L("polld")
    A(f"s_mov_b32 s{scnt}, 0")
    A.label(lp)
    issue()
    A("s_waitcnt vmcnt(0)")
    rs = list(regs)
    A(f"v_mov_b32 v{vt}, v{rs[0]}")
    i = 1
    while i < len(rs):
        if i + 1 < len(rs):
            A(f"v_max3_u32 v{vt}, v{vt}, v{rs[i]}, v{rs[i+1]}"); i += 2
        else:
            A(f"v_max_u32 v{vt}, v{vt}, v{rs[i]}"); i += 1
    A(f"v_cmp_eq_u32 vcc, -1, v{vt}")
    A(f"s_cbranch_vccz {done}")
    A(f"s_add_u32 s{scnt}, s{scnt}, 1")
    A(f"s_cmp_gt_u32 s{scnt}, {SPIN_LIMIT}")
    A(f"s_cbranch_scc1 {done}")
    A("s_sleep 1")
    A(f"s_branch {lp}")
    A.label(done)

def poll_counter(off, target, vz, vt, scnt=39):
    lp = L("pc"); done = L("pcd")
    A(f"s_mov_b32 s{scnt}, 0")
    A.label(lp)
    A(f"buffer_load_dword v{vt}, v{vz}, s[12:15], 0 offen offset:{off} sc1")
    A("s_waitcnt vmcnt(0)")
    A(f"v_readfirstlane_b32 s38, v{vt}")
    A("s_nop 0")
    A(f"s_cmp_ge_u32 s38, {target}")
    A(f"s_cbranch_scc1 {done}")
    A(f"s_add_u32 s{scnt}, s{scnt}, 1")
    A(f"s_cmp_gt_u32 s{scnt}, {SPIN_LIMIT}")
    A(f"s_cbranch_scc1 {done}")
    A("s_sleep 1")
    A(f"s_branch {lp}")
    A.label(done)

def get_nonce(vz, vt, scnt=39):
    lp = L("gn"); done = L("gnd")
    A(f"s_mov_b32 s{scnt}, 0")
    A.label(lp)
    A(f"buffer_load_dword v{vt}, v{vz}, s[12:15], 0 offen sc1")
    A("s_waitcnt vmcnt(0)")
    A(f"v_readfirstlane_b32 s70, v{vt}")
    A("s_nop 0")
    A(f"s_cmp_lg_u32 s70, 0")
    A(f"s_cbranch_scc1 {done}")
    A(f"s_add_u32 s{scnt}, s{scnt}, 1")
    A(f"s_cmp_gt_u32 s{scnt}, {SPIN_LIMIT}")
    A(f"s_cbranch_scc1 {done}")
    A("s_sleep 2")
    A(f"s_branch {lp}")
    A.label(done)

def poll_tagged(issue, tags, vt, scnt=39):
    lp = L("pt"); done = L("ptd")
    A(f"s_mov_b32 s{scnt}, 0")
    A.label(lp)
    issue()
    A("s_waitcnt vmcnt(0)")
    A(f"v_xor_b32 v{vt}, s70, v{tags[0]}")
    for t in tags[1:]:
        A(f"v_xor_b32 v{vt+1}, s70, v{t}")
        A(f"v_or_b32 v{vt}, v{vt}, v{vt+1}")
    A(f"v_cmp_ne_u32 vcc, 0, v{vt}")
    A(f"s_cbranch_vccz {done}")
    A(f"s_add_u32 s{scnt}, s{scnt}, 1")
    A(f"s_cmp_gt_u32 s{scnt}, {SPIN_LIMIT}")
    A(f"s_cbranch_scc1 {done}")
    A("s_sleep 2")
    A(f"s_branch {lp}")
    A.label(done)

def gemv_fma8(vw, npass, vacc, vx, vt, stride=4):
    for p in range(npass):
        for i in range(4):
            w = vw + stride*p + i
            A(f"v_lshlrev_b32 v{vt}, 16, v{w}")
            A(f"v_and_b32 v{vt+1}, 0xffff0000, v{w}")
            if p == 0:
                A(f"v_mul_f32 v{vacc+2*i}, v{vx+p}, v{vt}")
                A(f"v_mul_f32 v{vacc+2*i+1}, v{vx+p}, v{vt+1}")
            else:
                A(f"v_fmac_f32 v{vacc+2*i}, v{vx+p}, v{vt}")
                A(f"v_fmac_f32 v{vacc+2*i+1}, v{vx+p}, v{vt+1}")

def reduce8(a):
    A("s_nop 1")
    for i in range(4):
        A(f"v_permlane32_swap_b32 v{a+i}, v{a+4+i}")
    for i in range(4):
        A(f"v_add_f32 v{a+i}, v{a+i}, v{a+4+i}")
    A("s_nop 1")
    for i in range(2):
        A(f"v_permlane16_swap_b32 v{a+i}, v{a+2+i}")
    for i in range(2):
        A(f"v_add_f32 v{a+i}, v{a+i}, v{a+2+i}")
    row_reduce([a, a+1], "v_add_f32")

def exec_rows():
    A("s_mov_b32 exec_lo, 0x00010001")
    A("s_mov_b32 exec_hi, 0x00010001")
def exec_all():
    A("s_mov_b64 exec, -1")

kernel_header(A, NAME)
A("s_cmp_ge_u32 s2, 256")
A("s_cbranch_scc1 .Lend")
A("s_load_dwordx8 s[72:79], s[0:1], 0")
A("s_load_dwordx8 s[80:87], s[0:1], 32")
A("s_load_dwordx8 s[88:95], s[0:1], 64")
A("s_load_dwordx4 s[96:99], s[0:1], 96")
A("v_lshrrev_b32 v1, 6, v0")
A("s_nop 0")
A("v_readfirstlane_b32 s20, v1")
A("v_and_b32 v1, 63, v0")
A("s_lshr_b32 s25, s2, 4")
A("s_and_b32 s26, s2, 15")
if PREF:
    A("s_getpc_b64 s[28:29]")
    A("s_and_b32 s28, s28, 0xffffff00")
    A("v_lshlrev_b32 v2, 4, v0")
    for i in range(PREF):
        A(f"v_min_u32 v3, .Lend-{NAME}-12, v2")
        A(f"global_load_dwordx4 v[252:255], v3, s[28:29]")
        A("v_add_u32 v2, 0x2000, v2")
A("s_waitcnt lgkmcnt(0)")
def mk_srd(d, p, n):
    A(f"s_mov_b32 s{d}, s{p}"); A(f"s_mov_b32 s{d+1}, s{p+1}")
    A(f"s_mov_b32 s{d+2}, {n}"); A(f"s_mov_b32 s{d+3}, 0x00020000")
mk_srd(8, 98, WS_SIZE)
mk_srd(12, 96, 256)
A("s_mov_b32 s16, s74"); A("s_mov_b32 s17, s75")
A("s_mov_b32 s18, s76"); A("s_mov_b32 s19, s77")
A("s_cmp_lt_u32 s20, 4")
A("s_cbranch_scc1 .Lstream")
A.label(".Laux")
A("s_setprio 3")
A("s_sub_u32 s27, s20, 4")
A("v_mov_b32 v52, 0")
A("v_lshlrev_b32 v2, 1, v1")
A("v_lshlrev_b32 v3, 2, v1")
SYNC = LDS_MISC + 1024
A("s_cmp_lg_u32 s27, 0")
A("s_cbranch_scc1 .Lnosync")
A(f"v_mov_b32 v8, {SYNC}")
A("v_mov_b32 v10, 0"); A("v_mov_b32 v11, 0")
A("ds_write_b64 v8, v[10:11]")
A("ds_write_b64 v8, v[10:11] offset:8")
A("ds_write_b64 v8, v[10:11] offset:16")
A("ds_write_b64 v8, v[10:11] offset:24")
A("v_mov_b32 v11, 0x7fffffff")
A("ds_write_b32 v8, v11 offset:28")
A("ds_write_b32 v8, v11 offset:48")
A("v_mov_b32 v11, 0")
A("ds_write_b64 v8, v[10:11] offset:32")
A("ds_write_b64 v8, v[10:11] offset:40")
A(f"v_mov_b32 v8, {QFLAG}")
A("ds_write_b64 v8, v[10:11]")
A("s_waitcnt lgkmcnt(0)")
A.label(".Lnosync")
A("s_barrier")
A("s_cmp_lg_u32 s2, 0")
A("s_cbranch_scc1 .Lnononce")
A("s_cmp_lg_u32 s27, 0")
A("s_cbranch_scc1 .Lnononce")
A("s_memrealtime s[70:71]")
A("s_waitcnt lgkmcnt(0)")
A("s_or_b32 s70, s70, 1")
A("v_mov_b32 v9, s70")
A("s_mov_b64 exec, 1")
A("buffer_store_dword v9, v52, s[12:15], 0 offen sc0 sc1")
exec_all()
A.label(".Lnononce")
stamp(0)
mk_srd(44, 72, 1280)
mk_srd(48, 90, 1280)
mk_srd(52, 92, 640*3840*2)
mk_srd(56, 78, 640*6144*2)
A("v_lshrrev_b32 v4, 2, v1")
A("v_and_b32 v5, 3, v1")
A("s_mul_i32 s28, s27, 160")
A("v_add_u32 v6, s28, v4")
A("v_lshlrev_b32 v7, 1, v6")
A("v_lshlrev_b32 v14, 2, v6")
A("s_cmp_lg_u32 s27, 0")
A("s_cbranch_scc1 .Lnoclear")
A("v_mov_b32 v9, -1")
A("s_mov_b64 exec, 0xffffffff")
A("s_cmp_ge_u32 s2, 120")
A("s_cbranch_scc1 .Lclr1")
A("s_lshl_b32 s28, s2, 7")
A(f"buffer_store_dword v9, v3, s[8:11], s28 offen offset:{WS_MOD} sc0 sc1")
A.label(".Lclr1")
A.label(".Lclr2")
A("s_mov_b64 exec, 0xff")
A("s_lshl_b32 s28, s25, 10")
A("s_lshl_b32 s29, s26, 5")
A("s_add_u32 s28, s28, s29")
A(f"s_add_u32 s28, s28, {WS_ML}")
A(f"buffer_store_dword v9, v3, s[8:11], s28 offen sc0 sc1")
A(f"buffer_store_dword v9, v3, s[8:11], s28 offen offset:512 sc0 sc1")
exec_all()
A("s_mul_i32 s28, s2, 1536")
A(f"s_add_u32 s28, s28, {WS_OP}")
A("v_lshlrev_b32 v8, 4, v1")
A("v_mov_b32 v10, -1"); A("v_mov_b32 v11, -1"); A("v_mov_b32 v12, -1"); A("v_mov_b32 v13, -1")
A(f"buffer_store_dwordx4 v[10:13], v8, s[8:11], s28 offen sc0 sc1")
A("s_mov_b64 exec, 0xffffffff")
A(f"buffer_store_dwordx4 v[10:13], v8, s[8:11], s28 offen offset:1024 sc0 sc1")
exec_all()
A("s_cmp_ge_u32 s2, 160")
A("s_cbranch_scc1 .Lclr3")
A("s_lshl_b32 s28, s2, 8")
A(f"s_add_u32 s28, s28, {WS_AP}")
A(f"buffer_store_dword v9, v3, s[8:11], s28 offen sc0 sc1")
A("s_branch .Lclr4")
A.label(".Lclr3")
A("s_sub_u32 s28, s2, 160")
A("s_cmp_ge_u32 s28, 48")
A("s_cbranch_scc1 .Lclr4")
A("s_mov_b64 exec, 0xffffffff")
A("s_lshl_b32 s28, s28, 7")
A(f"s_add_u32 s28, s28, {WS_ACT}")
A(f"buffer_store_dword v9, v3, s[8:11], s28 offen sc0 sc1")
exec_all()
A.label(".Lclr4")
A("buffer_load_dword v62, v52, s[12:15], 0 offen sc1")
A.label(".Lnoclear")
A("s_cmp_ge_u32 s2, 64")
A("s_cbranch_scc1 .Lld_q")
for p in range(10):
    A(f"buffer_load_ushort v{16+p}, v7, s[48:51], 0 offen offset:{32*p}")
A("v_mul_u32_u24 v8, 7680, v6")
A("v_lshl_add_u32 v8, v5, 4, v8")
A("s_lshl_b32 s28, s2, 6")
for p in range(10):
    A(f"buffer_load_dwordx4 v[{64+4*p}:{67+4*p}], v8, s[52:55], s28 offen")
    A(f"s_add_u32 s28, s28, {16*7680}")
A("s_branch .Lld_done20")
A.label(".Lld_q")
for p in range(10):
    A(f"buffer_load_ushort v{16+p}, v7, s[44:47], 0 offen offset:{32*p}")
for p in range(10):
    A(f"buffer_load_ushort v{28+p}, v2, s[44:47], 0 offen offset:{128*p}")
A("v_mul_u32_u24 v8, 12288, v6")
A("v_lshl_add_u32 v8, v5, 4, v8")
A("s_sub_u32 s28, s2, 64")
A("s_lshl_b32 s28, s28, 6")
for p in range(10):
    A(f"buffer_load_dwordx4 v[{104+4*p}:{107+4*p}], v8, s[56:59], s28 offen")
    A(f"s_add_u32 s28, s28, {16*12288}")
A.label(".Lld_done")
A("s_waitcnt vmcnt(30)")
A.label(".Lld_done20")
A("s_waitcnt vmcnt(20)")
stamp(1)
A("s_cmp_lg_u32 s27, 0")
A("s_cbranch_scc1 .Lnoatom")
A("v_mov_b32 v9, 1")
A("s_mov_b64 exec, 1")
A("buffer_atomic_add v9, v52, s[12:15], 0 offen offset:128 sc1")
exec_all()
A("v_readfirstlane_b32 s70, v62")
A("s_nop 0")
A("s_cmp_lg_u32 s70, 0")
A("s_cbranch_scc1 .Lhavenonce")
get_nonce(52, 9)
A.label(".Lhavenonce")
if FLEX:
    A("s_getreg_b32 s28, hwreg(HW_REG_XCC_ID)")
    A("s_and_b32 s69, s28, 1")
    A("v_mov_b32 v10, s69")
    A("v_mov_b32 v11, s70")
    A("s_lshl_b32 s28, s2, 3")
    A(f"s_add_u32 s28, s28, {WS_XP}")
    A("s_mov_b64 exec, 1")
    A("buffer_store_dwordx2 v[10:11], v52, s[8:11], s28 offen sc1")
    exec_all()
A.label(".Lnoatom")
stamp(2)


def reduce8_rg4(a):
    A("s_nop 1")
    for i in range(4):
        A(f"v_permlane32_swap_b32 v{a+i}, v{a+4+i}")
    for i in range(4):
        A(f"v_add_f32 v{a+i}, v{a+i}, v{a+4+i}")
    A("s_nop 1")
    for i in range(2):
        A(f"v_permlane16_swap_b32 v{a+i}, v{a+2+i}")
    for i in range(2):
        A(f"v_add_f32 v{a+i}, v{a+i}, v{a+2+i}")
    for ctl in ("row_ror:4", "row_ror:8"):
        A("s_nop 1")
        for i in range(2):
            A(f"v_add_f32_dpp v{a+i}, v{a+i}, v{a+i} {ctl} row_mask:0xf bank_mask:0xf")

def reduce8_rg8(a):
    A("s_nop 1")
    for i in range(4):
        A(f"v_permlane32_swap_b32 v{a+i}, v{a+4+i}")
    for i in range(4):
        A(f"v_add_f32 v{a+i}, v{a+i}, v{a+4+i}")
    A("s_nop 1")
    for i in range(2):
        A(f"v_permlane16_swap_b32 v{a+i}, v{a+2+i}")
    for i in range(2):
        A(f"v_add_f32 v{a+i}, v{a+i}, v{a+2+i}")
    A("s_nop 1")
    for i in range(2):
        A(f"v_add_f32_dpp v{a+i}, v{a+i}, v{a+i} row_ror:8 row_mask:0xf bank_mask:0xf")

def reduce8_rg2(a):
    A("s_nop 1")
    for i in range(4):
        A(f"v_permlane32_swap_b32 v{a+i}, v{a+4+i}")
    for i in range(4):
        A(f"v_add_f32 v{a+i}, v{a+i}, v{a+4+i}")
    A("s_nop 1")
    for i in range(2):
        A(f"v_permlane16_swap_b32 v{a+i}, v{a+2+i}")
    for i in range(2):
        A(f"v_add_f32 v{a+i}, v{a+i}, v{a+2+i}")
    for ctl in ("row_ror:2", "row_ror:4", "row_ror:8"):
        A("s_nop 1")
        for i in range(2):
            A(f"v_add_f32_dpp v{a+i}, v{a+i}, v{a+i} {ctl} row_mask:0xf bank_mask:0xf")

def part_addr(vdst, ncl_log, vt, base):
    A(f"v_lshrrev_b32 v{vt}, 4, v1")
    A(f"v_and_b32 v{vdst}, 1, v{vt}")
    A(f"v_lshrrev_b32 v{vt}, 1, v{vt}")
    A(f"v_lshlrev_b32 v{vdst}, 3, v{vdst}")
    A(f"v_lshl_add_u32 v{vdst}, v{vt}, 4, v{vdst}")
    A(f"v_and_b32 v{vt}, {(1<<ncl_log)-1}, v1")
    A(f"v_lshl_add_u32 v{vdst}, v{vt}, 5, v{vdst}")
    A(f"s_mul_i32 s28, s27, {(8<<ncl_log)*4}")
    A(f"s_add_u32 s28, s28, {base}")
    A(f"v_add_u32 v{vdst}, s28, v{vdst}")

def exec_low(ncl_log):
    m16 = (1 << (1 << ncl_log)) - 1
    m32 = m16 | (m16 << 16)
    A(f"s_mov_b32 exec_lo, {m32:#x}")
    A(f"s_mov_b32 exec_hi, {m32:#x}")

PRO_RED = LDS_MISC

def silu_c():
    for p in range(10):
        A(f"v_lshlrev_b32 v{16+p}, 16, v{16+p}")
        silu(16+p, 8)
        bf16r(16+p, 8)

def job_partial(vw, red):
    gemv_fma8(vw, 10, 40, 16, 8)
    reduce8_rg4(40)
    part_addr(8, 2, 9, red)
    exec_low(2)
    A("ds_write_b64 v8, v[40:41]")
    exec_all()
    A("s_waitcnt lgkmcnt(0)")

def aux_arrive(ph):
    A(f"v_mov_b32 v8, {SYNC + 4*ph}")
    A("v_mov_b32 v9, 1")
    A("s_mov_b64 exec, 1")
    A("ds_add_u32 v8, v9")
    exec_all()

def aux_wait(ph):
    lp = L("aw")
    A(f"v_mov_b32 v8, {SYNC + 4*ph}")
    A.label(lp)
    A("ds_read_b32 v9, v8")
    A("s_waitcnt lgkmcnt(0)")
    A("v_readfirstlane_b32 s28, v9")
    A("s_nop 0")
    A("s_cmp_lt_u32 s28, 4")
    A(f"s_cbranch_scc1 {lp}")

def job_final(red, dst):
    A(f"v_add_u32 v8, {red}, v3")
    for w in range(4):
        A(f"ds_read_b32 v{44+w}, v8 offset:{128*w}")
    A("s_waitcnt lgkmcnt(0)")
    A("v_add_f32 v44, v44, v45")
    A("v_add_f32 v46, v46, v47")
    A("v_add_f32 v44, v44, v46")

A("s_cmp_ge_u32 s2, 64")
A("s_cbranch_scc1 .Lp1_q")
A("s_waitcnt vmcnt(10)")
stamp(16)
silu_c()
stamp(17)
A("s_waitcnt vmcnt(0)")
A(f"v_mov_b32 v8, {SYNC + 12}")
A("v_mov_b32 v9, 1")
A("s_mov_b64 exec, 1")
A("ds_add_u32 v8, v9")
exec_all()
stamp(18)
job_partial(64, PRO_RED)
stamp(19)
aux_arrive(0)
A("s_cmp_lg_u32 s27, 0")
A("s_cbranch_scc1 .Lp1_done")
aux_wait(0)
stamp(20)
job_final(PRO_RED, None)
bf16r(44, 8)
A("s_mov_b64 exec, 0xffffffff")
A("s_cmp_ge_u32 s2, 40")
A("s_cbranch_scc1 .Lp1_nc")
A("v_mov_b32 v45, s70")
A("v_lshlrev_b32 v8, 3, v1")
A("s_lshl_b32 s28, s2, 8")
A(f"s_add_u32 s28, s28, {WS_MODT}")
A(f"buffer_store_dwordx2 v[44:45], v8, s[8:11], s28 offen sc0 sc1")
exec_all()
A("s_branch .Lp1_done")
A.label(".Lp1_nc")
desentinel(44, 8)
A("s_lshl_b32 s28, s2, 7")
A(f"buffer_store_dword v44, v3, s[8:11], s28 offen offset:{WS_MOD} sc0 sc1")
exec_all()
A("s_branch .Lp1_done")
A.label(".Lp1_q")
A("s_waitcnt vmcnt(10)")
for p in range(10):
    A(f"v_lshlrev_b32 v{28+p}, 16, v{28+p}")
    A(f"v_lshlrev_b32 v{16+p}, 16, v{16+p}")
A("v_add_f32 v8, v28, v29")
for p in range(2, 10):
    A(f"v_add_f32 v8, v8, v{28+p}")
wave_reduce(8, "v_add_f32")
A("v_mul_f32 v8, 0x3acccccd, v8")
A("v_sub_f32 v10, v28, v8")
A("v_mul_f32 v9, v10, v10")
for p in range(1, 10):
    A(f"v_sub_f32 v10, v{28+p}, v8")
    A("v_fma_f32 v9, v10, v10, v9")
wave_reduce(9, "v_add_f32")
A("v_mul_f32 v9, 0x3acccccd, v9")
bf16r(8, 10); bf16r(9, 10)
A("v_add_f32 v9, 0x3727c5ac, v9")
bf16r(9, 10)
A("v_sqrt_f32 v9, v9")
A("s_nop 0")
bf16r(9, 10)
for p in range(10):
    d = 16 + p
    A(f"v_sub_f32 v{d}, v{d}, v8")
    bf16r(d, 10)
    A(f"v_mov_b32 v11, v9")
    fdiv(d, d, 11, 12, 13)
    bf16r(d, 10)
A.label(".Lp1_done")
stamp(3)
A("s_cmp_ge_u32 s2, 64")
A("s_cbranch_scc1 .Lp2_q")
A.label(".Lp2_none")
A("s_branch .Lp2_done")
A.label(".Lp2_q")
A(f"v_mov_b32 v12, {MFLAG}")
A("s_cmp_lg_u32 s27, 0")
A("s_cbranch_scc1 .Lm_wait")
stamp(4)
A("v_lshlrev_b32 v13, 4, v1")
A(f"s_mov_b32 s29, {WS_MODT}")
def iss():
    for i in range(10):
        A(f"buffer_load_dwordx4 v[{144+4*i}:{147+4*i}], v13, s[8:11], s29 offen offset:{1024*i} sc1" if i < 4 else f"buffer_load_dwordx4 v[{144+4*i}:{147+4*i}], v13, s[8:11], 0 offen offset:{WS_MODT + 1024*i} sc1")
poll_tagged(iss, [145 + 2*j for j in range(20)], 53)
A("v_lshlrev_b32 v13, 3, v1")
A(f"v_add_u32 v13, {MODL}, v13")
for i in range(10):
    A(f"v_mov_b32 v{145+4*i}, v{146+4*i}")
    A(f"ds_write_b64 v13, v[{144+4*i}:{145+4*i}] offset:{512*i}")
A("s_waitcnt lgkmcnt(0)")
A("v_mov_b32 v13, 1")
A("ds_write_b32 v12, v13")
A.label(".Lm_wait")
A("ds_read_b32 v13, v12")
A("s_waitcnt lgkmcnt(0)")
A("v_readfirstlane_b32 s28, v13")
A("s_nop 0")
A("s_cmp_eq_u32 s28, 1")
A("s_cbranch_scc1 .Lm_ok")
A("s_sleep 1")
A("s_branch .Lm_wait")
A.label(".Lm_ok")
stamp(5)
A(f"v_add_u32 v13, {MODL}, v14")
for p in range(10):
    A(f"ds_read_b32 v{144+p}, v13 offset:{64*p}")
    A(f"ds_read_b32 v{154+p}, v13 offset:{2560 + 64*p}")
A("s_waitcnt vmcnt(0) lgkmcnt(0)")
for p in range(10):
    d = 16 + p
    A(f"v_add_f32 v{154+p}, 1.0, v{154+p}")
    bf16r(154+p, 10)
    A(f"v_mul_f32 v{d}, v{d}, v{154+p}")
    bf16r(d, 10)
    A(f"v_add_f32 v{d}, v{d}, v{144+p}")
    bf16r(d, 10)
job_partial(104, PRO_RED + 512)
aux_arrive(1)
A("s_cmp_lg_u32 s27, 0")
A("s_cbranch_scc1 .Lp2_done")
aux_wait(1)
job_final(PRO_RED + 512, None)
A("s_nop 1")
A("v_mov_b32_dpp v45, v44 quad_perm:[1,0,3,2] row_mask:0xf bank_mask:0xf")
A("v_cvt_pk_bf16_f32 v44, v44, v45")
A("v_mov_b32 v45, s70")
A("s_sub_u32 s28, s2, 64")
A("s_lshl_b32 s28, s28, 7")
A(f"s_add_u32 s28, s28, {WS_QT}")
A("s_mov_b32 exec_lo, 0x55555555")
A("s_mov_b32 exec_hi, 0")
A("buffer_store_dwordx2 v[44:45], v3, s[8:11], s28 offen sc0 sc1")
exec_all()
A.label(".Lp2_done")
A("s_setprio 0")
A("s_sub_u32 s28, s2, 64")
A("s_cmp_ge_u32 s28, 56")
A("s_cbranch_scc1 .Lp3_done")
for p in range(10):
    A(f"buffer_load_ushort v{16+p}, v7, s[48:51], 0 offen offset:{32*p}")
A("v_mul_u32_u24 v8, 7680, v6")
A("v_lshl_add_u32 v8, v5, 4, v8")
A("s_lshl_b32 s28, s2, 6")
for p in range(10):
    A(f"buffer_load_dwordx4 v[{64+4*p}:{67+4*p}], v8, s[52:55], s28 offen")
    A(f"s_add_u32 s28, s28, {16*7680}")
A("s_waitcnt vmcnt(10)")
silu_c()
A("s_waitcnt vmcnt(0)")
job_partial(64, PRO_RED)
aux_arrive(2)
A("s_cmp_lg_u32 s27, 0")
A("s_cbranch_scc1 .Lp3_done")
aux_wait(2)
job_final(PRO_RED, None)
bf16r(44, 8)
desentinel(44, 8)
A("s_lshl_b32 s28, s2, 7")
A("s_mov_b64 exec, 0xffffffff")
A(f"buffer_store_dword v44, v3, s[8:11], s28 offen offset:{WS_MOD} sc0 sc1")
exec_all()
A.label(".Lp3_done")
A("s_setprio 0")
stamp(6)
A("s_cmp_ge_u32 s2, 160")
A("s_cbranch_scc1 .Lpre_t3")
mk_srd(60, 80, 6144*640*2)
A("s_mul_hi_u32 s30, s2, 0x1999999a")
A("s_mul_i32 s31, s30, 10")
A("s_sub_u32 s31, s2, s31")
A("s_mul_i32 s28, s30, 491520")
A("s_lshl_b32 s31, s31, 7")
A("s_add_u32 s28, s28, s31")
A(f"s_mul_i32 s31, s27, {96*1280}")
A("s_add_u32 s28, s28, s31")
A("v_lshrrev_b32 v8, 3, v1")
A("v_mul_u32_u24 v8, 1280, v8")
A("v_and_b32 v9, 7, v1")
A("v_lshl_add_u32 v8, v9, 4, v8")
for p in range(12):
    A(f"buffer_load_dwordx4 v[{64+4*p}:{67+4*p}], v8, s[60:63], s28 offen")
    A(f"s_add_u32 s28, s28, {8*1280}")
A("s_branch .Laux_wait")
A.label(".Lpre_t3")
A("s_cmp_ge_u32 s2, 208")
A("s_cbranch_scc1 .Lpre_t4")
mk_srd(60, 84, 640*1536*2)
mk_srd(64, 86, 640*1536*2)
A("s_sub_u32 s28, s2, 160")
A("s_lshl_b32 s28, s28, 6")
A("v_mul_u32_u24 v8, 3072, v6")
A("v_lshl_add_u32 v8, v5, 4, v8")
for p in range(10):
    A(f"buffer_load_dwordx4 v[{64+4*p}:{67+4*p}], v8, s[60:63], s28 offen")
    A(f"buffer_load_dwordx4 v[{104+4*p}:{107+4*p}], v8, s[64:67], s28 offen")
    A(f"s_add_u32 s28, s28, {16*3072}")
poll_counter(128, 256, 52, 53)
def iss():
    A(f"s_mov_b32 s29, {WS_MOD + 2560*3}")
    for p in range(10):
        A(f"buffer_load_dword v{144+p}, v14, s[8:11], s29 offen offset:{64*p} sc1")
    A(f"s_mov_b32 s29, {WS_MOD + 2560*4}")
    for p in range(10):
        A(f"buffer_load_dword v{154+p}, v14, s[8:11], s29 offen offset:{64*p} sc1")
poll_loop(iss, list(range(144, 164)), 53)
for p in range(10):
    A(f"v_add_f32 v{154+p}, 1.0, v{154+p}")
    bf16r(154+p, 10)
A("s_branch .Laux_wait")
A.label(".Lpre_t4")
A("s_cmp_ge_u32 s2, 248")
A("s_cbranch_scc1 .Laux_wait")
mk_srd(60, 88, 1536*640*2)
A("s_sub_u32 s28, s2, 208")
A("s_lshl_b32 s28, s28, 5")
A("s_mul_i32 s31, s27, 491520")
A("s_add_u32 s28, s28, s31")
A("v_lshrrev_b32 v8, 1, v1")
A("v_mul_u32_u24 v8, 1280, v8")
A("v_and_b32 v9, 1, v1")
A("v_lshl_add_u32 v8, v9, 4, v8")
for p in range(12):
    A(f"buffer_load_dwordx4 v[{64+4*p}:{67+4*p}], v8, s[60:63], s28 offen")
    A(f"s_add_u32 s28, s28, {32*1280}")
A.label(".Laux_wait")
if FLEX:
    A("s_cmp_lg_u32 s27, 0")
    A("s_cbranch_scc1 .Lnobias")
    A("s_xor_b32 s28, s2, 1")
    A("s_lshl_b32 s28, s28, 3")
    A(f"s_add_u32 s29, s28, {WS_XP}")
    def iss():
        A("buffer_load_dwordx2 v[10:11], v52, s[8:11], s29 offen sc1")
    poll_tagged(iss, [11], 12)
    A("v_readfirstlane_b32 s28, v10")
    A("s_nop 0")
    A("s_and_b32 s29, s2, 1")
    A("s_cmp_eq_u32 s29, 0")
    A("s_cselect_b32 s30, s28, s69")
    A("s_cselect_b32 s31, s69, s28")
    A("s_sub_u32 s30, s30, s31")
    A("v_mov_b32 v10, s30")
    A(f"v_mov_b32 v11, {BIASW}")
    A("ds_write_b32 v11, v10")
    A(f"v_mov_b32 v8, {TML}")
    A.label(".Ltm_wait")
    A("ds_read_b128 v[12:15], v8")
    A("s_waitcnt lgkmcnt(0)")
    A("v_min_u32 v10, v12, v13")
    A("v_min3_u32 v10, v10, v14, v15")
    A("v_cmp_eq_u32 vcc, 0, v10")
    A("s_cbranch_vccz .Ltm_ok")
    A("s_sleep 8")
    A("s_branch .Ltm_wait")
    A.label(".Ltm_ok")
    A("v_add_u32 v10, v12, v13")
    A("v_add3_u32 v10, v10, v14, v15")
    A("v_mov_b32 v11, s70")
    A("s_lshl_b32 s28, s2, 3")
    A(f"s_add_u32 s28, s28, {WS_XT}")
    A("s_mov_b64 exec, 1")
    A("buffer_store_dwordx2 v[10:11], v52, s[8:11], s28 offen sc1")
    exec_all()
    A("v_and_b32 v9, 15, v1")
    A("v_lshlrev_b32 v9, 3, v9")
    A("s_lshl_b32 s29, s25, 7")
    A(f"s_add_u32 s29, s29, {WS_XT}")
    def iss():
        A("buffer_load_dwordx2 v[10:11], v9, s[8:11], s29 offen sc1")
    poll_tagged(iss, [11], 12)
    A("v_cvt_f32_u32 v10, v10")
    A("v_rcp_f32 v10, v10")
    A("s_nop 0")
    A("v_mov_b32 v12, v10")
    row_reduce([12], "v_add_f32")
    A("v_rcp_f32 v12, v12")
    A("s_nop 0")
    A("v_mul_f32 v10, v10, v12")
    import struct as _st
    f2u = lambda x: _st.unpack("<I", _st.pack("<f", x))[0]
    A(f"v_mov_b32 v13, {f2u(8.0 - 64.0*DAMP):#x}")
    A(f"v_mov_b32 v14, {f2u(1024.0*DAMP):#x}")
    A("v_fma_f32 v10, v10, v14, v13")
    A("v_max_f32 v10, 0, v10")
    A(f"v_min_f32 v10, {f2u(28.0):#x}, v10")
    for sh in (1, 2, 4, 8):
        A("v_mov_b32 v12, 0")
        A("s_nop 1")
        A(f"v_mov_b32_dpp v12, v10 row_shr:{sh} row_mask:0xf bank_mask:0xf")
        A("s_nop 1")
        A("v_add_f32 v10, v10, v12")
    A("s_nop 1")
    A("v_readlane_b32 s28, v10, 15")
    A("s_nop 1")
    A("v_rcp_f32 v12, s28")
    A("s_nop 0")
    A("v_mul_f32 v10, v10, v12")
    A(f"v_mul_f32 v10, {f2u(128.0):#x}, v10")
    A("v_add_f32 v10, 0.5, v10")
    A("v_cvt_u32_f32 v10, v10")
    A("v_min_u32 v10, 128, v10")
    A("v_mov_b32 v12, 0")
    A("s_nop 1")
    A("v_mov_b32_dpp v12, v10 row_shr:1 row_mask:0xf bank_mask:0xf")
    A("v_sub_u32 v12, v10, v12")
    A("v_and_b32 v13, 15, v1")
    A("v_cmp_eq_u32 vcc, 15, v13")
    A("v_mov_b32 v14, 128")
    A("s_nop 0")
    A("v_cndmask_b32 v10, v10, v14, vcc")
    A("v_mov_b32 v12, 0")
    A("s_nop 1")
    A("v_mov_b32_dpp v12, v10 row_shr:1 row_mask:0xf bank_mask:0xf")
    A("v_sub_u32 v12, v10, v12")
    A("v_cmp_lt_u32 vcc, 32, v12")
    A("v_add_u32 v13, 1, v13")
    A("v_lshlrev_b32 v13, 3, v13")
    A("s_cmp_eq_u64 vcc, 0")
    A("s_cbranch_scc1 .Lsplit_ok")
    A("v_mov_b32 v10, v13")
    A.label(".Lsplit_ok")
    A("s_nop 1")
    A("v_readlane_b32 s30, v10, s26")
    A("s_sub_u32 s31, s26, 1")
    A("s_max_i32 s31, s31, 0")
    A("s_nop 1")
    A("v_readlane_b32 s29, v10, s31")
    A("s_cmp_eq_u32 s26, 0")
    A("s_cselect_b32 s29, 0, s29")
    A("s_cmp_eq_u32 s26, 15")
    A("s_cselect_b32 s30, 128, s30")
    A("v_mov_b32 v10, s29")
    A("v_mov_b32 v11, s30")
    A(f"v_mov_b32 v12, {FLW}")
    A("ds_write_b32 v12, v11 offset:4")
    A("s_waitcnt lgkmcnt(0)")
    A("ds_write_b32 v12, v10")
    A.label(".Lnobias")
poll_counter(128, 256, 52, 53)
if POOL and not FLEX:
    A("s_cmp_lg_u32 s27, 0")
    A("s_cbranch_scc1 .Lfeed_done")
    A("s_and_b32 s54, s25, 3")
    A("s_lshl_b32 s54, s54, 6")
    A("s_lshr_b32 s55, s25, 2")
    A("s_lshl_b32 s55, s55, 2")
    A("s_add_u32 s54, s54, s55")
    A("s_add_u32 s54, s54, 16")
    A(f"v_mov_b32 v8, {PQ}")
    A("s_mov_b32 s44, 0")
    A("s_mov_b32 s47, 0")
    A("s_mov_b32 s48, 0")
    A.label(".Lfeed")
    A("ds_read_b32 v9, v8")
    A("s_waitcnt lgkmcnt(0)")
    A("v_readfirstlane_b32 s45, v9")
    A("s_nop 0")
    A(f"s_add_u32 s45, s45, {BATCH}")
    A("s_cmp_le_u32 s45, s44")
    A("s_cbranch_scc0 .Lfeed_get")
    A("s_sleep 4")
    A("s_branch .Lfeed")
    A.label(".Lfeed_get")
    A("s_sub_u32 s49, s44, s47")
    A(f"s_cmp_ge_u32 s49, {4*(CAP-S_STATIC) - BATCH}")
    A("s_cbranch_scc1 .Lfeed_fin")
    A(f"v_mov_b32 v10, {BATCH}")
    A("s_mov_b64 exec, 1")
    A("buffer_atomic_add v10, v52, s[12:15], s54 offen sc0")
    exec_all()
    A("s_waitcnt vmcnt(0)")
    A("v_readfirstlane_b32 s46, v10")
    A("s_nop 0")
    A(f"s_cmp_ge_u32 s46, {2*POOL}")
    A("s_cbranch_scc1 .Lfeed_fin")
    A(f"s_cmp_ge_u32 s46, {POOL}")
    A("s_cselect_b32 s49, 1, 0")
    A("s_cmp_eq_u32 s49, s48")
    A("s_cbranch_scc1 .Lfeed_same")
    A("s_mov_b32 s48, s49")
    A("s_mov_b32 s47, s44")
    A.label(".Lfeed_same")
    A("v_add_u32 v10, s46, v1")
    A("v_add_u32 v11, s44, v1")
    A("v_and_b32 v11, 31, v11")
    A("v_lshlrev_b32 v11, 2, v11")
    A(f"v_add_u32 v11, {PQE}, v11")
    A(f"s_mov_b64 exec, {(1<<BATCH)-1}")
    A("ds_write_b32 v11, v10")
    exec_all()
    A("s_waitcnt lgkmcnt(0)")
    A(f"s_add_u32 s44, s44, {BATCH}")
    A("v_mov_b32 v10, s44")
    A("ds_write_b32 v8, v10 offset:4")
    A("s_branch .Lfeed")
    A.label(".Lfeed_fin")
    A("v_mov_b32 v10, 1")
    A("ds_write_b32 v8, v10 offset:8")
    A.label(".Lfeed_done")
A("s_waitcnt vmcnt(0) lgkmcnt(0)")
A("s_branch .Ltail")

A.label(".Lstream")
A("s_barrier")
mk_srd(4, 74, KV_BYTES)
stamp(0)
if os.environ.get('REMAP'):
    A("s_lshr_b32 s27, s26, 1")
    A("s_and_b32 s28, s26, 1")
    A("s_lshl_b32 s28, s28, 3")
    A("s_or_b32 s27, s27, s28")
    A("s_lshl_b32 s27, s27, 2")
else:
    A("s_lshl_b32 s27, s26, 2")
A("s_add_u32 s27, s27, s20")
A(f"s_mul_i32 s24, s25, {2*HEADB}")
A(f"s_mul_i32 s23, s20, {RING}")
A("s_mov_b32 s22, 0")
A("s_mov_b32 s21, 0")
A("s_mov_b32 s67, 0")
A(f"s_mov_b32 s68, {6-int(os.environ.get('LOOK','6'))}")
A(f"s_mul_i32 s32, s20, {SCW}")
A(f"s_add_u32 s32, s32, {LDS_SC}")
A("s_and_b32 s54, s25, 3")
A("s_lshl_b32 s54, s54, 6")
A("s_lshr_b32 s55, s25, 2")
A("s_lshl_b32 s55, s55, 2")
A("s_add_u32 s54, s54, s55")
A("s_add_u32 s54, s54, 16")
A("s_mov_b32 s44, 0")
A("s_mov_b32 s45, 0")
A("s_mov_b32 s46, -2")
A("s_mov_b32 s49, 0x7fffffff")
A("s_mov_b32 s51, 0x7fffffff")
A("s_mov_b32 s47, 0")
A("s_mov_b32 s48, 0")
A("v_mov_b32 v52, 0")
A("v_mov_b32 v63, 0")
for i in range(3):
    A(f"v_add_u32 v{2+i}, {64*i}, v1")
    A(f"v_mul_u32_u24 v{2+i}, 2731, v{2+i}")
    A(f"v_lshrrev_b32 v{2+i}, 16, v{2+i}")
    A(f"v_and_b32 v{2+i}, 6, v{2+i}")
    A(f"v_lshlrev_b32 v{2+i}, 4, v{2+i}")
    A(f"v_lshlrev_b32 v5, 4, v1")
    A(f"v_xor_b32 v{2+i}, v{2+i}, v5")

def issue_tile(sd, so, tile):
    A(f"s_cmp_lt_u32 s{sd}, 1024")
    A("s_cselect_b32 s4, s16, s18")
    A("s_cselect_b32 s5, s17, s19")
    A(f"s_add_u32 s29, s{so}, {6144*tile}")
    A("s_add_u32 m0, s23, s22")
    A("s_add_u32 s30, s29, 3072")
    for i in range(3):
        A(f"buffer_load_dwordx4 v{2+i}, s[4:7], s29 offen offset:{1024*i} nt lds")
    A("s_add_u32 m0, m0, 3072")
    A("s_nop 0")
    for i in range(3):
        A(f"buffer_load_dwordx4 v{2+i}, s[4:7], s30 offen offset:{1024*i} nt lds")
    A("s_add_u32 s22, s22, 6144")
    A(f"s_cmp_eq_u32 s22, {RING}")
    A("s_cselect_b32 s22, 0, s22")

def take_ticket(t):
    A(f"v_mov_b32 v62, {PQ}")
    A("v_mov_b32 v59, 1")
    A("s_mov_b64 exec, 1")
    A("ds_add_rtn_u32 v59, v62, v59")
    exec_all()
    A("s_waitcnt lgkmcnt(0)")
    A("v_readfirstlane_b32 s31, v59")
    A.label(f".Lt_spin{t}")
    A("ds_read_b64 v[58:59], v62 offset:4")
    A("s_waitcnt lgkmcnt(0)")
    A("v_readfirstlane_b32 s28, v58")
    A("v_readfirstlane_b32 s29, v59")
    A("s_nop 0")
    A("s_cmp_lt_u32 s31, s28")
    A(f"s_cbranch_scc1 .Lt_ok{t}")
    A("s_cmp_lg_u32 s29, 0")
    A(f"s_cbranch_scc1 .Lt_none{t}")
    A("s_sleep 1")
    A(f"s_branch .Lt_spin{t}")
    A.label(f".Lt_none{t}")
    A("s_mov_b32 s46, 0x7fffffff")
    A(f"s_branch .Lt_done{t}")
    A.label(f".Lt_ok{t}")
    A("s_and_b32 s31, s31, 31")
    A("s_lshl_b32 s31, s31, 2")
    A(f"s_add_u32 s31, s31, {PQE}")
    A("v_mov_b32 v59, s31")
    A("ds_read_b32 v59, v59")
    A("s_waitcnt lgkmcnt(0)")
    A("v_readfirstlane_b32 s46, v59")
    A("s_nop 0")
    A.label(f".Lt_done{t}")

GEN = [0]
def gen_next(sd, so):
    GEN[0] += 1; t = GEN[0]
    A.label(f".Lg_top{t}")
    A("s_cmp_ge_u32 s44, 2")
    A(f"s_cbranch_scc1 .Lg_v{t}")
    A("s_cmp_eq_u32 s44, 0")
    A(f"s_cselect_b32 s28, {SA}, {SB}")
    A("s_cmp_lt_u32 s45, s28")
    A(f"s_cbranch_scc1 .Lg_static{t}")
    if FLEX:
        A("s_cmp_eq_u32 s44, 0")
        A(f"s_cbranch_scc0 .Lg_fb{t}")
        A("s_cmp_lg_u32 s49, 0x7fffffff")
        A(f"s_cbranch_scc1 .Lg_bk{t}")
        A(f"v_mov_b32 v62, {BIASW}")
        A.label(f".Lg_bs{t}")
        A("ds_read_b32 v59, v62")
        A("s_waitcnt lgkmcnt(0)")
        A("v_readfirstlane_b32 s49, v59")
        A("s_nop 0")
        A("s_cmp_eq_u32 s49, 0x7fffffff")
        A(f"s_cbranch_scc0 .Lg_bk{t}")
        A("s_sleep 1")
        A(f"s_branch .Lg_bs{t}")
        A.label(f".Lg_bk{t}")
        A(f"s_mul_i32 s28, s49, {BA}")
        A("s_add_u32 s28, s28, 4")
        A("s_and_b32 s29, s2, 1")
        A("s_cmp_eq_u32 s29, 0")
        A("s_cselect_b32 s29, 0, s28")
        A("s_cselect_b32 s30, s28, 8")
        A(f"s_sub_u32 s28, s45, {SA}")
        A("s_lshl_b32 s28, s28, 2")
        A("s_add_u32 s28, s28, s20")
        A("s_add_u32 s28, s28, s29")
        A("s_cmp_ge_u32 s28, s30")
        A(f"s_cbranch_scc1 .Lg_next{t}")
        A("s_add_u32 s45, s45, 1")
        A("s_lshr_b32 s29, s26, 1")
        A("s_lshl_b32 s29, s29, 3")
        A("s_add_u32 s28, s28, s29")
        A(f"s_add_u32 s28, s28, {64*SA}")
        A(f"s_branch .Lg_rec{t}")
        A.label(f".Lg_fb{t}")
        A("s_cmp_lg_u32 s51, 0x7fffffff")
        A(f"s_cbranch_scc1 .Lg_ck{t}")
        A(f"v_mov_b32 v62, {FLW}")
        A.label(f".Lg_cs{t}")
        A("ds_read_b32 v59, v62")
        A("s_waitcnt lgkmcnt(0)")
        A("v_readfirstlane_b32 s51, v59")
        A("s_nop 0")
        A("s_cmp_eq_u32 s51, 0x7fffffff")
        A(f"s_cbranch_scc1 .Lg_cw{t}")
        A("ds_read_b32 v59, v62 offset:4")
        A("s_waitcnt lgkmcnt(0)")
        A("v_readfirstlane_b32 s46, v59")
        A("s_nop 0")
        A(f"s_branch .Lg_ck{t}")
        A.label(f".Lg_cw{t}")
        A("s_sleep 1")
        A(f"s_branch .Lg_cs{t}")
        A.label(f".Lg_ck{t}")
        A(f"s_sub_u32 s28, s45, {SB}")
        A("s_lshl_b32 s28, s28, 2")
        A("s_add_u32 s28, s28, s20")
        A("s_add_u32 s28, s28, s51")
        A("s_cmp_ge_u32 s28, s46")
        A(f"s_cbranch_scc1 .Lg_next{t}")
        A("s_add_u32 s45, s45, 1")
        A(f"s_add_u32 s28, s28, {64*SB}")
        A(f"s_branch .Lg_rec{t}")
    elif POOL:
        A("s_cmp_eq_u32 s44, 0")
        A("s_cselect_b32 s29, s47, s48")
        A(f"s_cmp_ge_u32 s29, {CAP}")
        A(f"s_cbranch_scc1 .Lg_next{t}")
        A("s_cmp_lg_u32 s46, -2")
        A(f"s_cbranch_scc1 .Lg_have{t}")
        take_ticket(t)
        A.label(f".Lg_have{t}")
        A(f"s_mul_i32 s28, s44, {POOL}")
        A("s_sub_u32 s28, s46, s28")
        A(f"s_cmp_ge_u32 s28, {POOL}")
        A(f"s_cbranch_scc1 .Lg_next{t}")
        A(f"s_add_u32 s28, s28, {64*S_STATIC}")
        A("s_mov_b32 s46, -2")
        A(f"s_branch .Lg_rec{t}")
    A.label(f".Lg_next{t}")
    A("s_add_u32 s44, s44, 1")
    A("s_mov_b32 s45, 0")
    A(f"s_branch .Lg_top{t}")
    A.label(f".Lg_static{t}")
    A("s_cmp_eq_u32 s44, 0")
    A(f"s_cselect_b32 s28, {SA}, {SB}")
    A("s_mul_i32 s28, s27, s28")
    A("s_add_u32 s28, s28, s45")
    A("s_add_u32 s45, s45, 1")
    A.label(f".Lg_rec{t}")
    A("s_cmp_eq_u32 s44, 0")
    A("s_cselect_b32 s29, s47, s48")
    A("s_lshl_b32 s30, s44, 4")
    A("s_add_u32 s30, s30, s29")
    A("s_add_u32 s29, s29, 1")
    A("s_cmp_eq_u32 s44, 0")
    A("s_cselect_b32 s47, s29, s47")
    A("s_cselect_b32 s48, s48, s29")
    A("s_mov_b32 m0, s30")
    A("s_nop 0")
    A("v_writelane_b32 v63, s28, m0")
    A(f"s_branch .Lg_emit{t}")
    A.label(f".Lg_v{t}")
    A("s_cmp_ge_u32 s44, 4")
    A(f"s_cbranch_scc1 .Lg_end{t}")
    A("s_cmp_eq_u32 s44, 2")
    A("s_cselect_b32 s29, s47, s48")
    A("s_cmp_lt_u32 s45, s29")
    A(f"s_cbranch_scc1 .Lg_rep{t}")
    A("s_add_u32 s44, s44, 1")
    A("s_mov_b32 s45, 0")
    A(f"s_branch .Lg_v{t}")
    A.label(f".Lg_rep{t}")
    A("s_sub_u32 s30, s44, 2")
    A("s_lshl_b32 s30, s30, 4")
    A("s_add_u32 s30, s30, s45")
    A("s_add_u32 s45, s45, 1")
    A("s_nop 1")
    A("v_readlane_b32 s28, v63, s30")
    A.label(f".Lg_emit{t}")
    A(f"s_lshl_b32 s29, s44, 9")
    A(f"s_or_b32 s{sd}, s29, s28")
    A("s_and_b32 s29, s44, 1")
    A(f"s_mul_i32 s29, s29, {HEADB}")
    A("s_mul_i32 s28, s28, 24576")
    A("s_add_u32 s28, s28, s29")
    A(f"s_add_u32 s{so}, s28, s24")
    A(f"s_branch .Lg_out{t}")
    A.label(f".Lg_end{t}")
    A(f"s_mov_b32 s{sd}, -1")
    A(f"s_mov_b32 s{so}, 0x80000000")
    A.label(f".Lg_out{t}")

def do_fill():
    gen_next(60, 63)
    gen_next(61, 64)
    for t in range(6):
        if t >= FILLW:
            A(f"s_waitcnt vmcnt({6*(FILLW-1)})")
        if t < 4: issue_tile(60, 63, t)
        else: issue_tile(61, 64, t-4)
    stamp(9)
GATE = os.environ.get('GATE', 'a')
if GATE == 'a':
    A("s_cmp_ge_u32 s2, 40")
    A("s_cbranch_scc1 .Lnogate")
    A(f"v_mov_b32 v53, {LDS_MISC + 1024 + 12}")
    A("s_mov_b32 s31, 4")
elif GATE == 'm':
    A("s_cmp_ge_u32 s2, 64")
    A(f"s_mov_b32 s29, {MFLAG}")
    A(f"s_cselect_b32 s30, s29, {LDS_MISC + 1024 + 12}")
    A("s_cselect_b32 s31, 1, 4")
    A("v_mov_b32 v53, s30")
elif GATE == 'h':
    A("s_cmp_ge_u32 s2, 64")
    A("s_cbranch_scc1 .Lnogate")
    A(f"v_mov_b32 v53, {LDS_MISC + 1024 + 12}")
    A("s_mov_b32 s31, 4")
A.label(".Lgate")
A("ds_read_b32 v54, v53")
A("s_waitcnt lgkmcnt(0)")
A("v_readfirstlane_b32 s28, v54")
A("s_nop 0")
A("s_cmp_ge_u32 s28, s31")
A("s_cbranch_scc1 .Lnogate")
A("s_sleep 1")
A("s_branch .Lgate")
A.label(".Lnogate")
do_fill()
A("v_lshrrev_b32 v6, 4, v1")
A("v_and_b32 v7, 15, v1")
A("v_lshlrev_b32 v8, 4, v6")
A("v_and_b32 v9, 6, v7")
A("v_xor_b32 v10, v6, v9")
A("v_xor_b32 v11, 4, v10")
A("v_mul_u32_u24 v12, 384, v7")
A("v_add_u32 v12, s23, v12")
A("v_lshl_add_u32 v10, v10, 4, v12")
A("v_lshl_add_u32 v11, v11, 4, v12")
A("v_bfe_u32 v40, v1, 2, 2")
A("v_and_b32 v41, 3, v1")
A("v_and_b32 v42, 1, v6")
A("v_lshlrev_b32 v42, 1, v42")
A("v_lshrrev_b32 v43, 1, v40")
A("v_or_b32 v42, v42, v43")
A("v_lshl_add_u32 v43, v6, 2, v40")
A("v_mul_u32_u24 v43, 384, v43")
A("v_lshl_add_u32 v43, v41, 3, v43")
A("v_add_u32 v43, s23, v43")
for bb in range(4):
    A(f"v_xor_b32 v44, {bb}, v42")
    A(f"v_lshl_add_u32 v{12+bb}, v44, 5, v43")
stamp(1)
A(f"v_mov_b32 v53, {QFLAG}")
A("s_cmp_lg_u32 s20, 0")
A("s_cbranch_scc1 .Lq_wait")
get_nonce(52, 54)
stamp(2)
A("s_mul_i32 s31, s25, 1536")
A(f"s_add_u32 s31, s31, {WS_QT}")
A("v_lshlrev_b32 v55, 4, v1")
A("v_min_u32 v56, 496, v55")
def issue_q():
    A(f"buffer_load_dwordx4 v[16:19], v55, s[8:11], s31 offen sc1")
    A(f"buffer_load_dwordx4 v[20:23], v56, s[8:11], s31 offen offset:1024 sc1")
poll_tagged(issue_q, [17, 19, 21, 23], 44)
A("v_mov_b32 v17, v18")
A("v_mov_b32 v21, v22")
A("v_lshrrev_b32 v55, 1, v55")
A("v_lshrrev_b32 v56, 1, v56")
A(f"v_add_u32 v55, {QLDS}, v55")
A(f"v_add_u32 v56, {QLDS + 512}, v56")
A("ds_write_b64 v55, v[16:17]")
A("ds_write_b64 v56, v[20:21]")
A("s_waitcnt lgkmcnt(0)")
A("v_mov_b32 v54, 1")
A("ds_write_b32 v53, v54")
A.label(".Lq_wait")
A("ds_read_b32 v54, v53")
A("s_waitcnt lgkmcnt(0)")
A("v_readfirstlane_b32 s28, v54")
A("s_nop 0")
A("s_cmp_eq_u32 s28, 1")
A("s_cbranch_scc1 .Lq_ok")
A("s_sleep 1")
A("s_branch .Lq_wait")
A.label(".Lq_ok")
A(f"v_add_u32 v55, {QLDS}, v8")
for st in range(6):
    A(f"ds_read_b128 v[{16+4*st}:{19+4*st}], v55 offset:{64*st}")
for st in range(6):
    A(f"ds_read_b128 v[{176+4*st}:{179+4*st}], v55 offset:{384+64*st}")
A("s_waitcnt lgkmcnt(0)")
QA = 64; KB = 16; ACC = 40
def build_qa(src):
    for t in range(4):
        A(f"v_cmp_eq_u32 vcc, {4*t}, v7")
        A("s_nop 1")
        for r in range(24):
            A(f"v_cndmask_b32 v{QA+24*t+r}, 0, v{src+r}, vcc")

OACC = 64; VB = 112
LOOK = int(os.environ.get('LOOK', '6'))
def adv_rd():
    A("s_add_u32 s21, s21, 6144")
    A(f"s_cmp_eq_u32 s21, {RING}")
    A("s_cselect_b32 s21, 0, s21")
def mid_issue(j):
    if j == 2:
        gen_next(62, 65)
    tt = j + LOOK
    sk = None
    if LOOK < 6:
        sk = L("sk")
        A(f"s_cmp_lt_u32 s67, {6-LOOK}")
        A("s_addc_u32 s67, s67, 0")
        A(f"s_cbranch_scc1 {sk}") if False else None
    if LOOK < 6:
        A(f"s_cmp_le_u32 s67, {6-LOOK}")
        A(f"s_cselect_b32 s31, 1, 0")
        A("s_cmp_eq_u32 s68, 0")
        A(f"s_cbranch_scc1 {sk}_go")
        A("s_sub_u32 s68, s68, 1")
        A(f"s_branch {sk}")
        A.label(f"{sk}_go")
    if tt < 4: issue_tile(60, 63, tt)
    elif tt < 8: issue_tile(61, 64, tt - 4)
    else: issue_tile(62, 65, tt - 8)
    if sk: A.label(sk)
def rotate():
    A("s_mov_b32 s60, s61"); A("s_mov_b32 s63, s64")
    A("s_mov_b32 s61, s62"); A("s_mov_b32 s64, s65")
    A("s_add_u32 s66, s66, 1")

def issue_ml(hsel):
    A(f"buffer_load_dword v57, v52, s[12:15], 0 offen offset:128 sc1")
    A("s_lshl_b32 s35, s25, 10")
    A(f"s_add_u32 s35, s35, {WS_ML + 512*hsel}")
    A("v_lshlrev_b32 v56, 3, v1")
    A(f"buffer_load_dwordx2 v[50:51], v56, s[8:11], s35 offen sc1")

def kphase(hsel):
    lp = L("kloop")
    A("v_mov_b32 v54, 0xff800000")
    A("v_mov_b32 v45, 0")
    A("v_lshlrev_b32 v55, 1, v1")
    A(f"s_add_u32 s34, s32, {4*SCW*hsel}")
    A("v_add_u32 v55, s34, v55")
    A("s_mov_b32 s66, 0")
    A.label(lp)
    for t in range(4):
        A(f"s_waitcnt vmcnt({6*(LOOK-1)})")
        A("v_add_u32 v160, s21, v10")
        A("v_add_u32 v161, s21, v11")
        for st in range(6):
            A(f"ds_read_b128 v[{KB+4*st}:{KB+4*st+3}], v{160 + (st&1)} offset:{(st>>1)*128}")
        adv_rd()
        A("s_waitcnt lgkmcnt(0)")
        mid_issue(t)
        for st in range(6):
            c = "0" if (t == 0 and st == 0) else f"v[{ACC}:{ACC+3}]"
            A(f"v_mfma_f32_16x16x32_bf16 v[{ACC}:{ACC+3}], v[{QA+24*t+4*st}:{QA+24*t+4*st+3}], v[{KB+4*st}:{KB+4*st+3}], {c}")
    if hsel == 1:
        sk = L("skip")
        A("s_cmp_lg_u32 s66, 3")
        A(f"s_cbranch_scc1 {sk}")
        issue_ml(0)
        A.label(sk)
    A("s_nop 7")
    A("s_nop 1")
    A(f"v_cvt_pk_bf16_f32 v44, v{ACC}, v{ACC}")
    A("v_lshlrev_b32 v44, 16, v44")
    A(f"v_mul_f32 v44, {SCALE}, v44")
    A("v_cvt_pk_bf16_f32 v44, v44, v44")
    A("ds_write_b16 v55, v44")
    A("v_lshlrev_b32 v44, 16, v44")
    A("v_max_f32 v46, v54, v44")
    A("v_sub_f32 v47, v54, v46")
    A("v_sub_f32 v48, v44, v46")
    A(f"v_mul_f32 v47, {LOG2E}, v47")
    A(f"v_mul_f32 v48, {LOG2E}, v48")
    A("v_exp_f32 v47, v47")
    A("v_exp_f32 v48, v48")
    A("v_mov_b32 v54, v46")
    A("v_fma_f32 v45, v45, v47, v48")
    A("v_add_u32 v55, 128, v55")
    if hsel == 0:
        k1 = L("tm")
        A("s_cmp_eq_u32 s66, 1")
        A("s_cselect_b32 s28, 1, 0")
        A("s_cmp_eq_u32 s66, 6")
        A("s_cselect_b32 s29, 2, 0")
        A("s_or_b32 s28, s28, s29")
        A("s_cmp_eq_u32 s28, 0")
        A(f"s_cbranch_scc1 {k1}")
        A("s_memrealtime s[30:31]")
        A("s_waitcnt lgkmcnt(0)")
        A("s_cmp_eq_u32 s28, 1")
        A("s_cselect_b32 s50, s30, s50")
        A(f"s_cbranch_scc1 {k1}")
        A("s_sub_u32 s30, s30, s50")
        A("s_max_u32 s30, s30, 1")
        A("s_lshl_b32 s31, s20, 2")
        A(f"s_add_u32 s31, s31, {TML}")
        A("v_mov_b32 v58, s31")
        A("v_mov_b32 v59, s30")
        A("ds_write_b32 v58, v59")
        A.label(k1)
    rotate()
    A("s_lshr_b32 s28, s60, 9")
    A(f"s_cmp_eq_u32 s28, {hsel}")
    A(f"s_cbranch_scc1 {lp}")
    A("v_mov_b32 v44, v54")
    wave_reduce(44, "v_max_f32")
    A("v_sub_f32 v47, v54, v44")
    A(f"v_mul_f32 v47, {LOG2E}, v47")
    A("v_exp_f32 v47, v47")
    A("s_nop 0")
    A("v_mul_f32 v45, v45, v47")
    wave_reduce(45, "v_add_f32")
    desentinel(44, 46); desentinel(45, 46)
    A("s_lshl_b32 s35, s25, 10")
    A("s_lshl_b32 s36, s27, 3")
    A("s_add_u32 s35, s35, s36")
    A(f"s_add_u32 s35, s35, {WS_ML + 512*hsel}")
    A("s_mov_b64 exec, 1")
    A(f"buffer_store_dwordx2 v[44:45], v52, s[8:11], s35 offen sc1")
    exec_all()

def vphase(hsel):
    ok = L("mlok"); slow = L("mlslow")
    if hsel == 1 and PREF:
        A("s_getpc_b64 s[28:29]")
        A(".Lpc_ref:")
        A("v_lshlrev_b32 v58, 4, v1")
        A("s_lshl_b32 s30, s20, 12")
        A("v_add_u32 v58, s30, v58")
        A("v_add_u32 v58, .Ltail-.Lpc_ref, v58")
        for i in range(4):
            A("v_min_u32 v59, .Lend-.Lpc_ref-12, v58")
            A("global_load_dwordx4 v[252:255], v59, s[28:29]")
            A("v_add_u32 v58, 1024, v58")
    A("v_cmp_gt_u32 vcc, 256, v57")
    A(f"s_cbranch_vccnz {slow}")
    A("v_max_u32 v53, v50, v51")
    A("v_cmp_eq_u32 vcc, -1, v53")
    A(f"s_cbranch_vccz {ok}")
    A.label(slow)
    poll_counter(128, 256, 52, 53)
    poll_loop(lambda: issue_ml(hsel), [50, 51], 53)
    A.label(ok)
    A("v_mov_b32 v44, v50")
    wave_reduce(44, "v_max_f32")
    A("v_sub_f32 v45, v50, v44")
    A(f"v_mul_f32 v45, {LOG2E}, v45")
    A("v_exp_f32 v45, v45")
    A("s_nop 0")
    A("v_mul_f32 v45, v45, v51")
    wave_reduce(45, "v_add_f32")
    A(f"s_add_u32 s34, s32, {4*SCW*hsel}")
    A("v_lshlrev_b32 v55, 1, v1")
    A("v_add_u32 v55, s34, v55")
    A("v_and_b32 v30, 31, v1")
    A("v_bfe_u32 v31, v30, 2, 2")
    A("v_lshlrev_b32 v31, 3, v31")
    A("v_bfe_u32 v32, v30, 4, 1")
    A("v_lshl_add_u32 v31, v32, 2, v31")
    A("v_and_b32 v32, 3, v30")
    A("v_add_u32 v31, v31, v32")
    A("v_lshlrev_b32 v31, 1, v31")
    A("v_lshrrev_b32 v32, 5, v1")
    A("v_lshl_add_u32 v31, v32, 6, v31")
    A("v_add_u32 v31, s34, v31")
    A("s_mov_b32 s66, 0")
    plp = L("ploop")
    A.label(plp)
    A("ds_read_u16 v47, v55")
    A("v_add_u32 v55, 128, v55")
    A("s_waitcnt lgkmcnt(0)")
    A("v_lshlrev_b32 v47, 16, v47")
    A("v_sub_f32 v47, v47, v44")
    A(f"v_mul_f32 v47, {LOG2E}, v47")
    A("v_exp_f32 v47, v47")
    A("v_mov_b32 v49, v45")
    fdiv(47, 47, 49, 56, 53)
    A("v_cvt_pk_bf16_f32 v47, v47, v47")
    A("ds_write_b16 v31, v47")
    A("v_add_u32 v31, 128, v31")
    A("s_add_u32 s66, s66, 1")
    A(f"s_cmp_lt_u32 s66, s{47+hsel}")
    A(f"s_cbranch_scc1 {plp}")
    A("v_lshlrev_b32 v55, 4, v6")
    A("v_add_u32 v55, s34, v55")
    for i in range(48):
        A(f"v_mov_b32 v{OACC+i}, 0")
    A("s_waitcnt lgkmcnt(0)")
    A("s_mov_b32 s66, 0")
    lp = L("vloop")
    A.label(lp)
    for step in range(2):
        A(f"ds_read_b128 v[20:23], v55 offset:{64*step}")
        for h in range(2):
            A(f"s_waitcnt vmcnt({6*(LOOK-1)})")
            for bb in range(4):
                A(f"v_add_u32 v{160+bb}, s21, v{12+bb}")
            for b in range(12):
                A(f"ds_read_b64_tr_b16 v[{VB+4*b+2*h}:{VB+4*b+2*h+1}], v{160+(b&3)} offset:{(b>>2)*128}")
            adv_rd()
            A("s_waitcnt lgkmcnt(0)")
            mid_issue(2*step + h)
        for b in range(12):
            A(f"v_mfma_f32_16x16x32_bf16 v[{OACC+4*b}:{OACC+4*b+3}], v[20:23], v[{VB+4*b}:{VB+4*b+3}], v[{OACC+4*b}:{OACC+4*b+3}]")
    if hsel == 0:
        sk = L("skip")
        A("s_cmp_lg_u32 s66, 3")
        A(f"s_cbranch_scc1 {sk}")
        issue_ml(1)
        A.label(sk)
    A("v_add_u32 v55, 128, v55")
    rotate()
    A("s_lshr_b32 s28, s60, 9")
    A(f"s_cmp_eq_u32 s28, {2+hsel}")
    A(f"s_cbranch_scc1 {lp}")
    A("s_nop 7")
    A("s_nop 1")
    A("v_lshlrev_b32 v56, 2, v1")
    A("v_add_u32 v56, s34, v56")
    A("s_mov_b64 exec, 0xffff")
    for b in range(12):
        A(f"ds_write_b32 v56, v{OACC+4*b} offset:{64*b}")
    exec_all()

if STAMP:
    A("s_getreg_b32 s69, hwreg(HW_REG_XCC_ID)")
    A("s_getreg_b32 s70, hwreg(HW_REG_HW_ID)") if False else A("s_mov_b32 s70, 0")
    sval(31, 69, 70)
stamp(3)
build_qa(16)
kphase(0)
stamp(4)
build_qa(176)
kphase(1)
stamp(5)
vphase(0)
stamp(6)
vphase(1)
stamp(7)
A("s_waitcnt vmcnt(0) lgkmcnt(0)")
A("s_branch .Ltail")

A.label(".Ltail")
A("s_barrier")
stamp(8)
A("v_lshlrev_b32 v3, 2, v1")
A("v_lshlrev_b32 v4, 2, v0")
A("v_mov_b32 v52, 0")
A("s_sub_u32 s27, s20, 4")
A("s_cmp_ge_u32 s20, 6")
A("s_cbranch_scc1 .Lt1_done")
A("v_cmp_le_u32 vcc, 192, v0")
A(f"v_mov_b32 v6, {4*SCW - 768}")
A("s_nop 0")
A("v_cndmask_b32 v5, 0, v6, vcc")
A("v_add_u32 v5, v5, v4")
A(f"v_add_u32 v5, {LDS_SC}, v5")
for w in range(4):
    A(f"ds_read_b32 v{20+w}, v5 offset:{SCW*w}")
A("s_waitcnt lgkmcnt(0)")
A("v_add_f32 v20, v20, v21")
A("v_add_f32 v22, v22, v23")
A("v_add_f32 v20, v20, v22")
desentinel(20, 24)
A("s_mul_i32 s28, s2, 1536")
A(f"s_add_u32 s28, s28, {WS_OP}")
A("buffer_store_dword v20, v4, s[8:11], s28 offen sc0 sc1")
A.label(".Lt1_done")
A("s_cmp_ge_u32 s2, 160")
A("s_cbranch_scc1 .Lt3")
A("s_mul_hi_u32 s30, s2, 0x1999999a")
A("s_cmp_ge_u32 s20, 6")
A("s_cbranch_scc1 .Lt2_b")
A("s_mul_i32 s28, s30, 24576")
A(f"s_add_u32 s28, s28, {WS_OP}")
def iss():
    for j in range(16):
        A(f"s_add_u32 s29, s28, {1536*j}")
        A(f"buffer_load_dword v{20+j}, v4, s[8:11], s29 offen sc1")
poll_loop(iss, list(range(20, 36)), 53)
for j in range(1, 16):
    A(f"v_add_f32 v20, v20, v{20+j}")
bf16r(20, 21)
A("ds_write_b32 v4, v20 offset:0")
A("s_waitcnt lgkmcnt(0)")
A.label(".Lt2_b")
stamp(9)
A("s_barrier")
A("s_cmp_lt_u32 s20, 4")
A("s_cbranch_scc1 .Lt2_c")
A("v_lshrrev_b32 v8, 3, v1")
A("s_mul_i32 s28, s27, 96")
A("v_add_u32 v8, s28, v8")
A("v_lshlrev_b32 v8, 2, v8")
for p in range(12):
    A(f"ds_read_b32 v{20+p}, v8 offset:{32*p}")
A("s_waitcnt lgkmcnt(0)")
gemv_fma8(64, 12, 40, 20, 8)
reduce8_rg8(40)
part_addr(8, 3, 9, 4096)
exec_low(3)
A("ds_write_b64 v8, v[40:41]")
exec_all()
A("s_waitcnt lgkmcnt(0)")
A.label(".Lt2_c")
A("s_barrier")
A("s_cmp_lg_u32 s20, 4")
A("s_cbranch_scc1 .Lend")
for w in range(4):
    A(f"ds_read_b32 v{20+w}, v3 offset:{4096 + 256*w}")
A("s_waitcnt lgkmcnt(0)")
A("v_add_f32 v20, v20, v21")
A("v_add_f32 v22, v22, v23")
A("v_add_f32 v20, v20, v22")
desentinel(20, 8)
A("s_lshl_b32 s28, s2, 8")
A(f"s_add_u32 s28, s28, {WS_AP}")
A("buffer_store_dword v20, v3, s[8:11], s28 offen sc0 sc1")
stamp(10)
A("s_branch .Lend")

A.label(".Lt3")
A("s_cmp_ge_u32 s2, 208")
A("s_cbranch_scc1 .Lt4")
mk_srd(44, 72, 1280)
A("v_lshlrev_b32 v2, 1, v0")
A("buffer_load_ushort v10, v2, s[44:47], 0 offen")
A("buffer_load_ushort v11, v2, s[44:47], 0 offen offset:1024")
A("v_cmp_gt_u32 vcc, 128, v0")
A("v_mov_b32 v6, 2048")
A("s_nop 0")
A("v_cndmask_b32 v5, 0, v6, vcc")
A("v_add_u32 v5, v5, v4")
def iss():
    A(f"s_mov_b32 s29, {WS_MOD + 2560*2}")
    A(f"buffer_load_dword v12, v4, s[8:11], s29 offen sc1")
    A(f"buffer_load_dword v13, v5, s[8:11], s29 offen sc1")
    for j in range(16):
        A(f"s_mov_b32 s29, {WS_AP + 2560*j}")
        A(f"buffer_load_dword v{20+j}, v4, s[8:11], s29 offen sc1")
        A(f"buffer_load_dword v{170+j}, v5, s[8:11], s29 offen sc1")
poll_loop(iss, [12, 13] + list(range(20, 36)) + list(range(170, 186)), 53)
stamp(11)
for j in range(1, 16):
    A(f"v_add_f32 v20, v20, v{20+j}")
    A(f"v_add_f32 v170, v170, v{170+j}")
A("v_mov_b32 v21, v170")
for i in range(2):
    a = 20 + i
    bf16r(a, 8)
    A(f"v_mul_f32 v{a}, v{a}, v{12+i}")
    bf16r(a, 8)
    A(f"v_lshlrev_b32 v{10+i}, 16, v{10+i}")
    A(f"v_add_f32 v{10+i}, v{10+i}, v{a}")
    bf16r(10+i, 8)
    A(f"ds_write_b32 v4, v{10+i} offset:{2048*i}")
A("s_waitcnt lgkmcnt(0)")
A("s_barrier")
A("s_cmp_lt_u32 s20, 4")
A("s_cbranch_scc1 .Lt3_c")
for p in range(10):
    A(f"ds_read_b32 v{28+p}, v3 offset:{256*p}")
A("v_lshrrev_b32 v8, 2, v1")
A("s_mul_i32 s28, s27, 160")
A("v_add_u32 v8, s28, v8")
A("v_lshlrev_b32 v8, 2, v8")
for p in range(10):
    A(f"ds_read_b32 v{16+p}, v8 offset:{64*p}")
A("s_waitcnt lgkmcnt(0)")
A("v_add_f32 v8, v28, v29")
for p in range(2, 10):
    A(f"v_add_f32 v8, v8, v{28+p}")
wave_reduce(8, "v_add_f32")
A("v_mul_f32 v8, 0x3acccccd, v8")
A("v_sub_f32 v10, v28, v8")
A("v_mul_f32 v9, v10, v10")
for p in range(1, 10):
    A(f"v_sub_f32 v10, v{28+p}, v8")
    A("v_fma_f32 v9, v10, v10, v9")
wave_reduce(9, "v_add_f32")
A("v_mul_f32 v9, 0x3acccccd, v9")
bf16r(8, 10); bf16r(9, 10)
A("v_add_f32 v9, 0x3727c5ac, v9")
bf16r(9, 10)
A("v_sqrt_f32 v9, v9")
A("s_nop 0")
bf16r(9, 10)
for p in range(10):
    d = 16 + p
    A(f"v_sub_f32 v{d}, v{d}, v8")
    bf16r(d, 10)
    A(f"v_mov_b32 v11, v9")
    fdiv(d, d, 11, 12, 13)
    bf16r(d, 10)
    A(f"v_mul_f32 v{d}, v{d}, v{154+p}")
    bf16r(d, 10)
    A(f"v_add_f32 v{d}, v{d}, v{144+p}")
    bf16r(d, 10)
gemv_fma8(64, 10, 40, 16, 8)
gemv_fma8(104, 10, 32, 16, 8)
reduce8_rg4(40); reduce8_rg4(32)
part_addr(8, 2, 9, 8192)
exec_low(2)
A("ds_write_b64 v8, v[40:41]")
A("ds_write_b64 v8, v[32:33] offset:512")
exec_all()
A("s_waitcnt lgkmcnt(0)")
A.label(".Lt3_c")
A("s_barrier")
A("s_cmp_lg_u32 s20, 4")
A("s_cbranch_scc1 .Lend")
for w in range(4):
    A(f"ds_read_b32 v{20+w}, v3 offset:{8192 + 128*w}")
    A(f"ds_read_b32 v{24+w}, v3 offset:{8192 + 512 + 128*w}")
A("s_waitcnt lgkmcnt(0)")
for b in (20, 24):
    A(f"v_add_f32 v{b}, v{b}, v{b+1}")
    A(f"v_add_f32 v{b+2}, v{b+2}, v{b+3}")
    A(f"v_add_f32 v{b}, v{b}, v{b+2}")
    bf16r(b, 8)
silu(20, 8)
bf16r(20, 8)
A("v_mul_f32 v20, v20, v24")
bf16r(20, 8)
desentinel(20, 8)
A("s_sub_u32 s28, s2, 160")
A("s_lshl_b32 s28, s28, 7")
A(f"s_add_u32 s28, s28, {WS_ACT}")
A("s_mov_b64 exec, 0xffffffff")
A("buffer_store_dword v20, v3, s[8:11], s28 offen sc0 sc1")
exec_all()
stamp(12)
A("s_branch .Lend")

A.label(".Lt4")
A("s_cmp_ge_u32 s2, 248")
A("s_cbranch_scc1 .Lend")
A("s_cmp_lt_u32 s20, 4")
A("s_cbranch_scc1 .Lt4_s")
mk_srd(44, 72, 1280)
A("s_sub_u32 s31, s2, 208")
A("s_lshl_b32 s31, s31, 4")
A("v_and_b32 v6, 15, v1")
A("v_add_u32 v6, s31, v6")
A("v_lshlrev_b32 v7, 1, v6")
A("v_lshlrev_b32 v6, 2, v6")
A("buffer_load_ushort v10, v7, s[44:47], 0 offen")
def iss():
    A(f"s_mov_b32 s29, {WS_MOD + 2560*2}")
    A(f"buffer_load_dword v12, v6, s[8:11], s29 offen sc1")
    A(f"s_mov_b32 s29, {WS_MOD + 2560*5}")
    A(f"buffer_load_dword v13, v6, s[8:11], s29 offen sc1")
    for j in range(16):
        A(f"s_mov_b32 s29, {WS_AP + 2560*j}")
        A(f"buffer_load_dword v{20+j}, v6, s[8:11], s29 offen sc1")
poll_loop(iss, [12, 13] + list(range(20, 36)), 53)
for j in range(1, 16):
    A(f"v_add_f32 v20, v20, v{20+j}")
bf16r(20, 8)
A("v_mul_f32 v20, v20, v12")
bf16r(20, 8)
A("v_lshlrev_b32 v10, 16, v10")
A("v_add_f32 v10, v10, v20")
bf16r(10, 8)
A("v_lshrrev_b32 v8, 1, v1")
A("s_mul_i32 s28, s27, 384")
A("v_add_u32 v8, s28, v8")
A("v_lshlrev_b32 v14, 2, v8")
A(f"s_mov_b32 s28, {WS_ACT}")
def iss():
    for p in range(12):
        A(f"buffer_load_dword v{20+p}, v14, s[8:11], s28 offen offset:{128*p} sc1")
poll_loop(iss, list(range(20, 32)), 53)
stamp(13)
gemv_fma8(64, 12, 40, 20, 8)
reduce8_rg2(40)
part_addr(8, 1, 9, 0)
exec_low(1)
A("ds_write_b64 v8, v[40:41]")
exec_all()
A("s_waitcnt lgkmcnt(0)")
A.label(".Lt4_s")
A("s_barrier")
A("s_cmp_lg_u32 s20, 4")
A("s_cbranch_scc1 .Lend")
A("v_and_b32 v8, 15, v1")
A("v_lshlrev_b32 v8, 2, v8")
for w in range(4):
    A(f"ds_read_b32 v{20+w}, v8 offset:{64*w}")
A("s_waitcnt lgkmcnt(0)")
A("v_add_f32 v20, v20, v21")
A("v_add_f32 v22, v22, v23")
A("v_add_f32 v20, v20, v22")
bf16r(20, 9)
A("v_mul_f32 v20, v20, v13")
bf16r(20, 9)
A("v_add_f32 v20, v20, v10")
A("v_cvt_pk_bf16_f32 v20, v20, v20")
mk_srd(68, 94, 1280)
A("s_mov_b64 exec, 0xffff")
A("buffer_store_short v20, v7, s[68:71], 0 offen")
exec_all()
stamp(14)
A.label(".Lend")
A("s_endpgm")

def fix_offsets(text):
    outl = []
    for line in text.split("\n"):
        m = re.match(r"^(\s*buffer_\w+ .*, s\[\d+:\d+\]), (\S+) offen offset:(\d+)(.*)$", line)
        if m and int(m.group(3)) >= 4096:
            off = int(m.group(3)); so = m.group(2)
            if so == "0":
                outl.append(f"    s_mov_b32 s100, {off}")
            else:
                outl.append(f"    s_add_u32 s100, {so}, {off}")
            outl.append(f"{m.group(1)}, s100 offen{m.group(4)}")
        else:
            outl.append(line)
    return "\n".join(outl)
body = fix_offsets(A.text())
launch = f"; @launch grid=(256,1,1) block=(512,1,1) lds={LDS_TOTAL}\n"
out = HEADER + launch + '.amdgcn_target "amdgcn-amd-amdhsa--gfx950"\n.text\n' + body + '.section .rodata,"a"\n.p2align 6\n' + kernel_desc(NAME, 256)
open(sys.argv[1], "w").write(out)
```

```python
import sys, struct, re
from asmlib import *

NS = int(sys.argv[2]) if len(sys.argv) > 2 else 6
FILLW = int(sys.argv[4]) if len(sys.argv) > 4 else 2
PREF = int(sys.argv[5]) if len(sys.argv) > 5 else 0
LATEFILL = FILLW == 0
if LATEFILL: FILLW = 6
NAME = "adaLN_cond__mha_block_cached__swiglu_ffn__decode_kernel"

WS_MOD = 0x0000
WS_Q   = 0x4000
WS_ML  = 0x8000
WS_OP  = 0x10000
WS_AP  = 0x70000
WS_ACT = 0x7A000
WS_MODT = 0xC000
WS_XP = 0xF000
WS_QT = 0x80000
WS_SIZE = 0x200000
KV_BYTES = 402653184
HEADB = 12582912
LOG2E = 0x3fb8aa3b
SCALE = 0x3d93cd3a
RING = NS * 6144
CAP = 14
SCW = CAP * 128
LDS_SC = 4 * RING
LDS_SCB = LDS_SC + 4 * SCW
LDS_MISC = LDS_SC + 8 * SCW
LDS_TOTAL = LDS_MISC + 2048
MODL = LDS_SCB
QLDS = LDS_SCB + 5120
QFLAG = LDS_SCB + 5888
MFLAG = LDS_SCB + 5892
import os
S_STATIC = int(os.environ.get('S_STATIC', '6'))
POOL = 512 - 64 * S_STATIC
POOLSH = max(POOL, 1).bit_length() - 1
PQ = LDS_MISC + 1024 + 16
PQE = LDS_MISC + 1280
FLEX = os.environ.get('FLEX', '1') == '1'
BA = int(os.environ.get('BA', '2')); BB = int(os.environ.get('BB', '1'))
BIASW = LDS_MISC + 1024 + 28
BATCH = int(os.environ.get('BATCH', '4'))
assert LDS_TOTAL <= 163840
SPIN_LIMIT = 400000

A = Asm()
def L(p): return A.newlabel(p)
STAMP = len(sys.argv) > 3 and sys.argv[3] == "stamp"
WS_TS = 0x100000
def stamp(idx):
    if not STAMP: return
    A("s_memrealtime s[46:47]" if False else "s_memrealtime s[36:37]")
    A("s_waitcnt lgkmcnt(0)")
    A("v_mov_b32 v58, s36")
    A("v_mov_b32 v59, s37")
    A("v_mov_b32 v60, 0")
    A("s_lshl_b32 s36, s2, 3")
    A("s_add_u32 s36, s36, s20")
    A("s_lshl_b32 s36, s36, 8")
    A(f"s_add_u32 s36, s36, {WS_TS + 8*idx}")
    A("s_mov_b64 exec, 1")
    A("buffer_store_dwordx2 v[58:59], v60, s[8:11], s36 offen")
    A("s_mov_b64 exec, -1")

def sval(idx, sreg, sreg2):
    if not STAMP: return
    A(f"v_mov_b32 v58, s{sreg}")
    A(f"v_mov_b32 v59, s{sreg2}")
    A("v_mov_b32 v60, 0")
    A("s_lshl_b32 s36, s2, 3")
    A("s_add_u32 s36, s36, s20")
    A("s_lshl_b32 s36, s36, 8")
    A(f"s_add_u32 s36, s36, {WS_TS + 8*idx}")
    A("s_mov_b64 exec, 1")
    A("buffer_store_dwordx2 v[58:59], v60, s[8:11], s36 offen")
    A("s_mov_b64 exec, -1")

def bf16r(v, t):
    A(f"v_cvt_pk_bf16_f32 v{t}, v{v}, v{v}")
    A(f"v_lshlrev_b32 v{v}, 16, v{t}")

def row_reduce(vs, op):
    for ctl in ("quad_perm:[1,0,3,2]", "quad_perm:[2,3,0,1]", "row_half_mirror", "row_mirror"):
        if len(vs) < 3:
            A("s_nop 1")
        for v in vs:
            A(f"{op}_dpp v{v}, v{v}, v{v} {ctl} row_mask:0xf bank_mask:0xf")

def wave_reduce(v, op, s=40):
    row_reduce([v], op)
    A("s_nop 1")
    for i in range(4):
        A(f"v_readlane_b32 s{s+i}, v{v}, {16*i}")
    A("s_nop 1")
    A(f"v_mov_b32 v{v}, s{s}")
    for i in range(1, 4):
        A(f"{op} v{v}, s{s+i}, v{v}")

def fdiv(d, n, den, t0, t1):
    A(f"v_rcp_f32 v{t0}, v{den}")
    A("s_nop 0")
    A(f"v_mul_f32 v{t1}, v{n}, v{t0}")
    A(f"v_fma_f32 v{den}, -v{t1}, v{den}, v{n}")
    A(f"v_fma_f32 v{d}, v{den}, v{t0}, v{t1}")

def silu(v, t):
    A(f"v_mov_b32 v{t+3}, 0x200")
    A(f"v_mul_f32 v{t}, 0xbfb8aa3b, v{v}")
    A(f"v_exp_f32 v{t}, v{t}")
    A("s_nop 0")
    A(f"v_add_f32 v{t}, 1.0, v{t}")
    A(f"v_cmp_class_f32 vcc, v{t}, v{t+3}")
    A(f"v_rcp_f32 v{t+1}, v{t}")
    A("s_nop 0")
    A(f"v_mul_f32 v{t+2}, v{v}, v{t+1}")
    A(f"v_fma_f32 v{t}, -v{t+2}, v{t}, v{v}")
    A(f"v_fma_f32 v{v}, v{t}, v{t+1}, v{t+2}")
    A(f"v_cndmask_b32 v{v}, v{v}, v{t+2}, vcc")

def desentinel(v, t):
    A(f"v_mov_b32 v{t}, 0x7fc00000")
    A(f"v_cmp_eq_u32 vcc, -1, v{v}")
    A("s_nop 1")
    A(f"v_cndmask_b32 v{v}, v{v}, v{t}, vcc")

TIGHT = [False]
def poll_loop(issue, regs, vt, scnt=39):
    lp = L("poll"); done = L("polld")
    A(f"s_mov_b32 s{scnt}, 0")
    A.label(lp)
    issue()
    A("s_waitcnt vmcnt(0)")
    rs = list(regs)
    A(f"v_mov_b32 v{vt}, v{rs[0]}")
    i = 1
    while i < len(rs):
        if i + 1 < len(rs):
            A(f"v_max3_u32 v{vt}, v{vt}, v{rs[i]}, v{rs[i+1]}"); i += 2
        else:
            A(f"v_max_u32 v{vt}, v{vt}, v{rs[i]}"); i += 1
    A(f"v_cmp_eq_u32 vcc, -1, v{vt}")
    A(f"s_cbranch_vccz {done}")
    A(f"s_add_u32 s{scnt}, s{scnt}, 1")
    A(f"s_cmp_gt_u32 s{scnt}, {SPIN_LIMIT}")
    A(f"s_cbranch_scc1 {done}")
    if not TIGHT[0]: A("s_sleep 1")
    A(f"s_branch {lp}")
    A.label(done)

def poll_counter(off, target, vz, vt, scnt=39):
    lp = L("pc"); done = L("pcd")
    A(f"s_mov_b32 s{scnt}, 0")
    A.label(lp)
    A(f"buffer_load_dword v{vt}, v{vz}, s[12:15], 0 offen offset:{off} sc1")
    A("s_waitcnt vmcnt(0)")
    A(f"v_readfirstlane_b32 s38, v{vt}")
    A("s_nop 0")
    A(f"s_cmp_ge_u32 s38, {target}")
    A(f"s_cbranch_scc1 {done}")
    A(f"s_add_u32 s{scnt}, s{scnt}, 1")
    A(f"s_cmp_gt_u32 s{scnt}, {SPIN_LIMIT}")
    A(f"s_cbranch_scc1 {done}")
    A("s_sleep 1")
    A(f"s_branch {lp}")
    A.label(done)

def get_nonce(vz, vt, scnt=39):
    lp = L("gn"); done = L("gnd")
    A(f"s_mov_b32 s{scnt}, 0")
    A.label(lp)
    A(f"buffer_load_dword v{vt}, v{vz}, s[12:15], 0 offen sc1")
    A("s_waitcnt vmcnt(0)")
    A(f"v_readfirstlane_b32 s70, v{vt}")
    A("s_nop 0")
    A(f"s_cmp_lg_u32 s70, 0")
    A(f"s_cbranch_scc1 {done}")
    A(f"s_add_u32 s{scnt}, s{scnt}, 1")
    A(f"s_cmp_gt_u32 s{scnt}, {SPIN_LIMIT}")
    A(f"s_cbranch_scc1 {done}")
    A("s_sleep 2")
    A(f"s_branch {lp}")
    A.label(done)

def poll_tagged(issue, tags, vt, scnt=39):
    lp = L("pt"); done = L("ptd")
    A(f"s_mov_b32 s{scnt}, 0")
    A.label(lp)
    issue()
    A("s_waitcnt vmcnt(0)")
    A(f"v_xor_b32 v{vt}, s70, v{tags[0]}")
    for t in tags[1:]:
        A(f"v_xor_b32 v{vt+1}, s70, v{t}")
        A(f"v_or_b32 v{vt}, v{vt}, v{vt+1}")
    A(f"v_cmp_ne_u32 vcc, 0, v{vt}")
    A(f"s_cbranch_vccz {done}")
    A(f"s_add_u32 s{scnt}, s{scnt}, 1")
    A(f"s_cmp_gt_u32 s{scnt}, {SPIN_LIMIT}")
    A(f"s_cbranch_scc1 {done}")
    A("s_sleep 2")
    A(f"s_branch {lp}")
    A.label(done)

def gemv_fma8(vw, npass, vacc, vx, vt, stride=4):
    for p in range(npass):
        for i in range(4):
            w = vw + stride*p + i
            A(f"v_lshlrev_b32 v{vt}, 16, v{w}")
            A(f"v_and_b32 v{vt+1}, 0xffff0000, v{w}")
            if p == 0:
                A(f"v_mul_f32 v{vacc+2*i}, v{vx+p}, v{vt}")
                A(f"v_mul_f32 v{vacc+2*i+1}, v{vx+p}, v{vt+1}")
            else:
                A(f"v_fmac_f32 v{vacc+2*i}, v{vx+p}, v{vt}")
                A(f"v_fmac_f32 v{vacc+2*i+1}, v{vx+p}, v{vt+1}")

def reduce8(a):
    A("s_nop 1")
    for i in range(4):
        A(f"v_permlane32_swap_b32 v{a+i}, v{a+4+i}")
    for i in range(4):
        A(f"v_add_f32 v{a+i}, v{a+i}, v{a+4+i}")
    A("s_nop 1")
    for i in range(2):
        A(f"v_permlane16_swap_b32 v{a+i}, v{a+2+i}")
    for i in range(2):
        A(f"v_add_f32 v{a+i}, v{a+i}, v{a+2+i}")
    row_reduce([a, a+1], "v_add_f32")

def exec_rows():
    A("s_mov_b32 exec_lo, 0x00010001")
    A("s_mov_b32 exec_hi, 0x00010001")
def exec_all():
    A("s_mov_b64 exec, -1")

kernel_header(A, NAME)
A("s_cmp_ge_u32 s2, 256")
A("s_cbranch_scc1 .Lend")
A("s_load_dwordx8 s[72:79], s[0:1], 0")
A("s_load_dwordx8 s[80:87], s[0:1], 32")
A("s_load_dwordx8 s[88:95], s[0:1], 64")
A("s_load_dwordx4 s[96:99], s[0:1], 96")
A("v_lshrrev_b32 v1, 6, v0")
A("s_nop 0")
A("v_readfirstlane_b32 s20, v1")
A("v_and_b32 v1, 63, v0")
A("s_lshr_b32 s25, s2, 4")
A("s_and_b32 s26, s2, 15")
if PREF:
    A("s_getpc_b64 s[28:29]")
    A("s_and_b32 s28, s28, 0xffffff00")
    A("v_lshlrev_b32 v2, 4, v0")
    for i in range(PREF):
        A(f"v_min_u32 v3, .Lend-{NAME}-12, v2")
        A(f"global_load_dwordx4 v[252:255], v3, s[28:29]")
        A("v_add_u32 v2, 0x2000, v2")
A("s_waitcnt lgkmcnt(0)")
def mk_srd(d, p, n):
    A(f"s_mov_b32 s{d}, s{p}"); A(f"s_mov_b32 s{d+1}, s{p+1}")
    A(f"s_mov_b32 s{d+2}, {n}"); A(f"s_mov_b32 s{d+3}, 0x00020000")
mk_srd(8, 98, WS_SIZE)
mk_srd(12, 96, 256)
A("s_mov_b32 s16, s74"); A("s_mov_b32 s17, s75")
A("s_mov_b32 s18, s76"); A("s_mov_b32 s19, s77")
A("s_cmp_lt_u32 s20, 4")
A("s_cbranch_scc1 .Lstream")
A.label(".Laux")
A("s_setprio 3")
A("s_sub_u32 s27, s20, 4")
A("v_mov_b32 v52, 0")
A("v_lshlrev_b32 v2, 1, v1")
A("v_lshlrev_b32 v3, 2, v1")
SYNC = LDS_MISC + 1024
A("s_cmp_lg_u32 s27, 0")
A("s_cbranch_scc1 .Lnosync")
A(f"v_mov_b32 v8, {SYNC}")
A("v_mov_b32 v10, 0"); A("v_mov_b32 v11, 0")
A("ds_write_b64 v8, v[10:11]")
A("ds_write_b64 v8, v[10:11] offset:8")
A("ds_write_b64 v8, v[10:11] offset:16")
A("ds_write_b64 v8, v[10:11] offset:24")
A("v_mov_b32 v11, 0x7fffffff")
A("ds_write_b32 v8, v11 offset:28")
A("v_mov_b32 v11, 0")
A(f"v_mov_b32 v8, {QFLAG}")
A("ds_write_b64 v8, v[10:11]")
A("s_waitcnt lgkmcnt(0)")
A.label(".Lnosync")
A("s_barrier")
A("s_cmp_lg_u32 s2, 0")
A("s_cbranch_scc1 .Lnononce")
A("s_cmp_lg_u32 s27, 0")
A("s_cbranch_scc1 .Lnononce")
A("s_memrealtime s[70:71]")
A("s_waitcnt lgkmcnt(0)")
A("s_or_b32 s70, s70, 1")
A("v_mov_b32 v9, s70")
A("s_mov_b64 exec, 1")
A("buffer_store_dword v9, v52, s[12:15], 0 offen sc0 sc1")
exec_all()
A.label(".Lnononce")
stamp(0)
mk_srd(44, 72, 1280)
mk_srd(48, 90, 1280)
mk_srd(52, 92, 640*3840*2)
mk_srd(56, 78, 640*6144*2)
A("v_lshrrev_b32 v4, 2, v1")
A("v_and_b32 v5, 3, v1")
A("s_mul_i32 s28, s27, 160")
A("v_add_u32 v6, s28, v4")
A("v_lshlrev_b32 v7, 1, v6")
A("v_lshlrev_b32 v14, 2, v6")
A("s_cmp_lg_u32 s27, 0")
A("s_cbranch_scc1 .Lnoclear")
A("v_mov_b32 v9, -1")
A("s_mov_b64 exec, 0xffffffff")
A("s_cmp_ge_u32 s2, 120")
A("s_cbranch_scc1 .Lclr1")
A("s_lshl_b32 s28, s2, 7")
A(f"buffer_store_dword v9, v3, s[8:11], s28 offen offset:{WS_MOD} sc0 sc1")
A.label(".Lclr1")
A.label(".Lclr2")
A("s_mov_b64 exec, 0xff")
A("s_lshl_b32 s28, s25, 10")
A("s_lshl_b32 s29, s26, 5")
A("s_add_u32 s28, s28, s29")
A(f"s_add_u32 s28, s28, {WS_ML}")
A(f"buffer_store_dword v9, v3, s[8:11], s28 offen sc0 sc1")
A(f"buffer_store_dword v9, v3, s[8:11], s28 offen offset:512 sc0 sc1")
exec_all()
A("s_mul_i32 s28, s2, 1536")
A(f"s_add_u32 s28, s28, {WS_OP}")
A("v_lshlrev_b32 v8, 4, v1")
A("v_mov_b32 v10, -1"); A("v_mov_b32 v11, -1"); A("v_mov_b32 v12, -1"); A("v_mov_b32 v13, -1")
A(f"buffer_store_dwordx4 v[10:13], v8, s[8:11], s28 offen sc0 sc1")
A("s_mov_b64 exec, 0xffffffff")
A(f"buffer_store_dwordx4 v[10:13], v8, s[8:11], s28 offen offset:1024 sc0 sc1")
exec_all()
A("s_cmp_ge_u32 s2, 160")
A("s_cbranch_scc1 .Lclr3")
A("s_lshl_b32 s28, s2, 8")
A(f"s_add_u32 s28, s28, {WS_AP}")
A(f"buffer_store_dword v9, v3, s[8:11], s28 offen sc0 sc1")
A("s_branch .Lclr4")
A.label(".Lclr3")
A("s_sub_u32 s28, s2, 160")
A("s_cmp_ge_u32 s28, 48")
A("s_cbranch_scc1 .Lclr4")
A("s_mov_b64 exec, 0xffffffff")
A("s_lshl_b32 s28, s28, 7")
A(f"s_add_u32 s28, s28, {WS_ACT}")
A(f"buffer_store_dword v9, v3, s[8:11], s28 offen sc0 sc1")
exec_all()
A.label(".Lclr4")
A("buffer_load_dword v62, v52, s[12:15], 0 offen sc1")
A.label(".Lnoclear")
A("s_cmp_ge_u32 s2, 64")
A("s_cbranch_scc1 .Lld_q")
for p in range(10):
    A(f"buffer_load_ushort v{16+p}, v7, s[48:51], 0 offen offset:{32*p}")
A("v_mul_u32_u24 v8, 7680, v6")
A("v_lshl_add_u32 v8, v5, 4, v8")
A("s_lshl_b32 s28, s2, 6")
for p in range(10):
    A(f"buffer_load_dwordx4 v[{64+4*p}:{67+4*p}], v8, s[52:55], s28 offen")
    A(f"s_add_u32 s28, s28, {16*7680}")
A("s_branch .Lld_done20")
A.label(".Lld_q")
for p in range(10):
    A(f"buffer_load_ushort v{16+p}, v7, s[44:47], 0 offen offset:{32*p}")
for p in range(10):
    A(f"buffer_load_ushort v{28+p}, v2, s[44:47], 0 offen offset:{128*p}")
A("v_mul_u32_u24 v8, 12288, v6")
A("v_lshl_add_u32 v8, v5, 4, v8")
A("s_sub_u32 s28, s2, 64")
A("s_lshl_b32 s28, s28, 6")
for p in range(10):
    A(f"buffer_load_dwordx4 v[{104+4*p}:{107+4*p}], v8, s[56:59], s28 offen")
    A(f"s_add_u32 s28, s28, {16*12288}")
A.label(".Lld_done")
A("s_waitcnt vmcnt(30)")
A.label(".Lld_done20")
A("s_waitcnt vmcnt(20)")
stamp(1)
A("s_cmp_lg_u32 s27, 0")
A("s_cbranch_scc1 .Lnoatom")
A("v_mov_b32 v9, 1")
A("s_mov_b64 exec, 1")
A("buffer_atomic_add v9, v52, s[12:15], 0 offen offset:128 sc1")
exec_all()
A("v_readfirstlane_b32 s70, v62")
A("s_nop 0")
A("s_cmp_lg_u32 s70, 0")
A("s_cbranch_scc1 .Lhavenonce")
get_nonce(52, 9)
A.label(".Lhavenonce")
if FLEX:
    A("s_getreg_b32 s28, hwreg(HW_REG_XCC_ID)")
    A("s_and_b32 s69, s28, 1")
    A("v_mov_b32 v10, s69")
    A("v_mov_b32 v11, s70")
    A("s_lshl_b32 s28, s2, 3")
    A(f"s_add_u32 s28, s28, {WS_XP}")
    A("s_mov_b64 exec, 1")
    A("buffer_store_dwordx2 v[10:11], v52, s[8:11], s28 offen sc1")
    exec_all()
A.label(".Lnoatom")
stamp(2)


def reduce8_rg4(a):
    A("s_nop 1")
    for i in range(4):
        A(f"v_permlane32_swap_b32 v{a+i}, v{a+4+i}")
    for i in range(4):
        A(f"v_add_f32 v{a+i}, v{a+i}, v{a+4+i}")
    A("s_nop 1")
    for i in range(2):
        A(f"v_permlane16_swap_b32 v{a+i}, v{a+2+i}")
    for i in range(2):
        A(f"v_add_f32 v{a+i}, v{a+i}, v{a+2+i}")
    for ctl in ("row_ror:4", "row_ror:8"):
        A("s_nop 1")
        for i in range(2):
            A(f"v_add_f32_dpp v{a+i}, v{a+i}, v{a+i} {ctl} row_mask:0xf bank_mask:0xf")

def reduce8_rg8(a):
    A("s_nop 1")
    for i in range(4):
        A(f"v_permlane32_swap_b32 v{a+i}, v{a+4+i}")
    for i in range(4):
        A(f"v_add_f32 v{a+i}, v{a+i}, v{a+4+i}")
    A("s_nop 1")
    for i in range(2):
        A(f"v_permlane16_swap_b32 v{a+i}, v{a+2+i}")
    for i in range(2):
        A(f"v_add_f32 v{a+i}, v{a+i}, v{a+2+i}")
    A("s_nop 1")
    for i in range(2):
        A(f"v_add_f32_dpp v{a+i}, v{a+i}, v{a+i} row_ror:8 row_mask:0xf bank_mask:0xf")

def reduce8_rg2(a):
    A("s_nop 1")
    for i in range(4):
        A(f"v_permlane32_swap_b32 v{a+i}, v{a+4+i}")
    for i in range(4):
        A(f"v_add_f32 v{a+i}, v{a+i}, v{a+4+i}")
    A("s_nop 1")
    for i in range(2):
        A(f"v_permlane16_swap_b32 v{a+i}, v{a+2+i}")
    for i in range(2):
        A(f"v_add_f32 v{a+i}, v{a+i}, v{a+2+i}")
    for ctl in ("row_ror:2", "row_ror:4", "row_ror:8"):
        A("s_nop 1")
        for i in range(2):
            A(f"v_add_f32_dpp v{a+i}, v{a+i}, v{a+i} {ctl} row_mask:0xf bank_mask:0xf")

def part_addr(vdst, ncl_log, vt, base):
    A(f"v_lshrrev_b32 v{vt}, 4, v1")
    A(f"v_and_b32 v{vdst}, 1, v{vt}")
    A(f"v_lshrrev_b32 v{vt}, 1, v{vt}")
    A(f"v_lshlrev_b32 v{vdst}, 3, v{vdst}")
    A(f"v_lshl_add_u32 v{vdst}, v{vt}, 4, v{vdst}")
    A(f"v_and_b32 v{vt}, {(1<<ncl_log)-1}, v1")
    A(f"v_lshl_add_u32 v{vdst}, v{vt}, 5, v{vdst}")
    A(f"s_mul_i32 s28, s27, {(8<<ncl_log)*4}")
    A(f"s_add_u32 s28, s28, {base}")
    A(f"v_add_u32 v{vdst}, s28, v{vdst}")

def exec_low(ncl_log):
    m16 = (1 << (1 << ncl_log)) - 1
    m32 = m16 | (m16 << 16)
    A(f"s_mov_b32 exec_lo, {m32:#x}")
    A(f"s_mov_b32 exec_hi, {m32:#x}")

PRO_RED = LDS_MISC

def silu_c():
    for p in range(10):
        A(f"v_lshlrev_b32 v{16+p}, 16, v{16+p}")
        silu(16+p, 8)
        bf16r(16+p, 8)

def job_partial(vw, red):
    gemv_fma8(vw, 10, 40, 16, 8)
    reduce8_rg4(40)
    part_addr(8, 2, 9, red)
    exec_low(2)
    A("ds_write_b64 v8, v[40:41]")
    exec_all()
    A("s_waitcnt lgkmcnt(0)")

def aux_arrive(ph):
    A(f"v_mov_b32 v8, {SYNC + 4*ph}")
    A("v_mov_b32 v9, 1")
    A("s_mov_b64 exec, 1")
    A("ds_add_u32 v8, v9")
    exec_all()

def aux_wait(ph):
    lp = L("aw")
    A(f"v_mov_b32 v8, {SYNC + 4*ph}")
    A.label(lp)
    A("ds_read_b32 v9, v8")
    A("s_waitcnt lgkmcnt(0)")
    A("v_readfirstlane_b32 s28, v9")
    A("s_nop 0")
    A("s_cmp_lt_u32 s28, 4")
    A(f"s_cbranch_scc1 {lp}")

def job_final(red, dst):
    A(f"v_add_u32 v8, {red}, v3")
    for w in range(4):
        A(f"ds_read_b32 v{44+w}, v8 offset:{128*w}")
    A("s_waitcnt lgkmcnt(0)")
    A("v_add_f32 v44, v44, v45")
    A("v_add_f32 v46, v46, v47")
    A("v_add_f32 v44, v44, v46")

A("s_cmp_ge_u32 s2, 64")
A("s_cbranch_scc1 .Lp1_q")
A("s_waitcnt vmcnt(10)")
stamp(16)
silu_c()
stamp(17)
A("s_waitcnt vmcnt(0)")
A(f"v_mov_b32 v8, {SYNC + 12}")
A("v_mov_b32 v9, 1")
A("s_mov_b64 exec, 1")
A("ds_add_u32 v8, v9")
exec_all()
stamp(18)
job_partial(64, PRO_RED)
stamp(19)
aux_arrive(0)
A("s_cmp_lg_u32 s27, 0")
A("s_cbranch_scc1 .Lp1_done")
aux_wait(0)
stamp(20)
job_final(PRO_RED, None)
bf16r(44, 8)
A("s_mov_b64 exec, 0xffffffff")
A("s_cmp_ge_u32 s2, 40")
A("s_cbranch_scc1 .Lp1_nc")
A("v_mov_b32 v45, s70")
A("v_lshlrev_b32 v8, 3, v1")
A("s_lshl_b32 s28, s2, 8")
A(f"s_add_u32 s28, s28, {WS_MODT}")
A(f"buffer_store_dwordx2 v[44:45], v8, s[8:11], s28 offen sc0 sc1")
exec_all()
A("s_branch .Lp1_done")
A.label(".Lp1_nc")
desentinel(44, 8)
A("s_lshl_b32 s28, s2, 7")
A(f"buffer_store_dword v44, v3, s[8:11], s28 offen offset:{WS_MOD} sc0 sc1")
exec_all()
A("s_branch .Lp1_done")
A.label(".Lp1_q")
A("s_waitcnt vmcnt(10)")
for p in range(10):
    A(f"v_lshlrev_b32 v{28+p}, 16, v{28+p}")
    A(f"v_lshlrev_b32 v{16+p}, 16, v{16+p}")
A("v_add_f32 v8, v28, v29")
for p in range(2, 10):
    A(f"v_add_f32 v8, v8, v{28+p}")
wave_reduce(8, "v_add_f32")
A("v_mul_f32 v8, 0x3acccccd, v8")
A("v_sub_f32 v10, v28, v8")
A("v_mul_f32 v9, v10, v10")
for p in range(1, 10):
    A(f"v_sub_f32 v10, v{28+p}, v8")
    A("v_fma_f32 v9, v10, v10, v9")
wave_reduce(9, "v_add_f32")
A("v_mul_f32 v9, 0x3acccccd, v9")
bf16r(8, 10); bf16r(9, 10)
A("v_add_f32 v9, 0x3727c5ac, v9")
bf16r(9, 10)
A("v_sqrt_f32 v9, v9")
A("s_nop 0")
bf16r(9, 10)
for p in range(10):
    d = 16 + p
    A(f"v_sub_f32 v{d}, v{d}, v8")
    bf16r(d, 10)
    A(f"v_mov_b32 v11, v9")
    fdiv(d, d, 11, 12, 13)
    bf16r(d, 10)
A.label(".Lp1_done")
stamp(3)
A("s_cmp_ge_u32 s2, 64")
A("s_cbranch_scc1 .Lp2_q")
A.label(".Lp2_none")
A("s_branch .Lp2_done")
A.label(".Lp2_q")
A(f"v_mov_b32 v12, {MFLAG}")
A("s_cmp_lg_u32 s27, 0")
A("s_cbranch_scc1 .Lm_wait")
stamp(4)
A("v_lshlrev_b32 v13, 4, v1")
A(f"s_mov_b32 s29, {WS_MODT}")
def iss():
    for i in range(10):
        A(f"buffer_load_dwordx4 v[{144+4*i}:{147+4*i}], v13, s[8:11], s29 offen offset:{1024*i} sc1" if i < 4 else f"buffer_load_dwordx4 v[{144+4*i}:{147+4*i}], v13, s[8:11], 0 offen offset:{WS_MODT + 1024*i} sc1")
poll_tagged(iss, [145 + 2*j for j in range(20)], 53)
A("v_lshlrev_b32 v13, 3, v1")
A(f"v_add_u32 v13, {MODL}, v13")
for i in range(10):
    A(f"v_mov_b32 v{145+4*i}, v{146+4*i}")
    A(f"ds_write_b64 v13, v[{144+4*i}:{145+4*i}] offset:{512*i}")
A("s_waitcnt lgkmcnt(0)")
A("v_mov_b32 v13, 1")
A("ds_write_b32 v12, v13")
A.label(".Lm_wait")
A("ds_read_b32 v13, v12")
A("s_waitcnt lgkmcnt(0)")
A("v_readfirstlane_b32 s28, v13")
A("s_nop 0")
A("s_cmp_eq_u32 s28, 1")
A("s_cbranch_scc1 .Lm_ok")
A("s_sleep 1")
A("s_branch .Lm_wait")
A.label(".Lm_ok")
stamp(5)
A(f"v_add_u32 v13, {MODL}, v14")
for p in range(10):
    A(f"ds_read_b32 v{144+p}, v13 offset:{64*p}")
    A(f"ds_read_b32 v{154+p}, v13 offset:{2560 + 64*p}")
A("s_waitcnt vmcnt(0) lgkmcnt(0)")
for p in range(10):
    d = 16 + p
    A(f"v_add_f32 v{154+p}, 1.0, v{154+p}")
    bf16r(154+p, 10)
    A(f"v_mul_f32 v{d}, v{d}, v{154+p}")
    bf16r(d, 10)
    A(f"v_add_f32 v{d}, v{d}, v{144+p}")
    bf16r(d, 10)
job_partial(104, PRO_RED + 512)
aux_arrive(1)
A("s_cmp_lg_u32 s27, 0")
A("s_cbranch_scc1 .Lp2_done")
aux_wait(1)
job_final(PRO_RED + 512, None)
A("s_nop 1")
A("v_mov_b32_dpp v45, v44 quad_perm:[1,0,3,2] row_mask:0xf bank_mask:0xf")
A("v_cvt_pk_bf16_f32 v44, v44, v45")
A("v_mov_b32 v45, s70")
A("s_sub_u32 s28, s2, 64")
A("s_lshl_b32 s28, s28, 7")
A(f"s_add_u32 s28, s28, {WS_QT}")
A("s_mov_b32 exec_lo, 0x55555555")
A("s_mov_b32 exec_hi, 0")
A("buffer_store_dwordx2 v[44:45], v3, s[8:11], s28 offen sc0 sc1")
exec_all()
A.label(".Lp2_done")
A("s_setprio 0")
if FLEX:
    A("s_cmp_lg_u32 s27, 0")
    A("s_cbranch_scc1 .Lnobias")
    A("s_xor_b32 s28, s2, 1")
    A("s_lshl_b32 s28, s28, 3")
    A(f"s_add_u32 s29, s28, {WS_XP}")
    def iss():
        A("buffer_load_dwordx2 v[10:11], v52, s[8:11], s29 offen sc1")
    poll_tagged(iss, [11], 12)
    A("v_readfirstlane_b32 s28, v10")
    A("s_nop 0")
    A("s_and_b32 s29, s2, 1")
    A("s_cmp_eq_u32 s29, 0")
    A("s_cselect_b32 s30, s28, s69")
    A("s_cselect_b32 s31, s69, s28")
    A("s_sub_u32 s30, s30, s31")
    A("v_mov_b32 v10, s30")
    A(f"v_mov_b32 v11, {BIASW}")
    A("ds_write_b32 v11, v10")
    A.label(".Lnobias")
A("s_sub_u32 s28, s2, 64")
A("s_cmp_ge_u32 s28, 56")
A("s_cbranch_scc1 .Lp3_done")
for p in range(10):
    A(f"buffer_load_ushort v{16+p}, v7, s[48:51], 0 offen offset:{32*p}")
A("v_mul_u32_u24 v8, 7680, v6")
A("v_lshl_add_u32 v8, v5, 4, v8")
A("s_lshl_b32 s28, s2, 6")
for p in range(10):
    A(f"buffer_load_dwordx4 v[{64+4*p}:{67+4*p}], v8, s[52:55], s28 offen")
    A(f"s_add_u32 s28, s28, {16*7680}")
A("s_waitcnt vmcnt(10)")
silu_c()
A("s_waitcnt vmcnt(0)")
job_partial(64, PRO_RED)
aux_arrive(2)
A("s_cmp_lg_u32 s27, 0")
A("s_cbranch_scc1 .Lp3_done")
aux_wait(2)
job_final(PRO_RED, None)
bf16r(44, 8)
desentinel(44, 8)
A("s_lshl_b32 s28, s2, 7")
A("s_mov_b64 exec, 0xffffffff")
A(f"buffer_store_dword v44, v3, s[8:11], s28 offen offset:{WS_MOD} sc0 sc1")
exec_all()
A.label(".Lp3_done")
A("s_setprio 0")
stamp(6)
A("s_cmp_ge_u32 s2, 160")
A("s_cbranch_scc1 .Lpre_t3")
mk_srd(60, 80, 6144*640*2)
A("s_mul_hi_u32 s30, s2, 0x1999999a")
A("s_mul_i32 s31, s30, 10")
A("s_sub_u32 s31, s2, s31")
A("s_mul_i32 s28, s30, 491520")
A("s_lshl_b32 s31, s31, 7")
A("s_add_u32 s28, s28, s31")
A(f"s_mul_i32 s31, s27, {96*1280}")
A("s_add_u32 s28, s28, s31")
A("v_lshrrev_b32 v8, 3, v1")
A("v_mul_u32_u24 v8, 1280, v8")
A("v_and_b32 v9, 7, v1")
A("v_lshl_add_u32 v8, v9, 4, v8")
for p in range(12):
    A(f"buffer_load_dwordx4 v[{64+4*p}:{67+4*p}], v8, s[60:63], s28 offen")
    A(f"s_add_u32 s28, s28, {8*1280}")
A("s_branch .Laux_wait")
A.label(".Lpre_t3")
A("s_cmp_ge_u32 s2, 208")
A("s_cbranch_scc1 .Lpre_t4")
mk_srd(60, 84, 640*1536*2)
mk_srd(64, 86, 640*1536*2)
A("s_sub_u32 s28, s2, 160")
A("s_lshl_b32 s28, s28, 6")
A("v_mul_u32_u24 v8, 3072, v6")
A("v_lshl_add_u32 v8, v5, 4, v8")
for p in range(10):
    A(f"buffer_load_dwordx4 v[{64+4*p}:{67+4*p}], v8, s[60:63], s28 offen")
    A(f"buffer_load_dwordx4 v[{104+4*p}:{107+4*p}], v8, s[64:67], s28 offen")
    A(f"s_add_u32 s28, s28, {16*3072}")
poll_counter(128, 256, 52, 53)
def iss():
    A(f"s_mov_b32 s29, {WS_MOD + 2560*3}")
    for p in range(10):
        A(f"buffer_load_dword v{144+p}, v14, s[8:11], s29 offen offset:{64*p} sc1")
    A(f"s_mov_b32 s29, {WS_MOD + 2560*4}")
    for p in range(10):
        A(f"buffer_load_dword v{154+p}, v14, s[8:11], s29 offen offset:{64*p} sc1")
poll_loop(iss, list(range(144, 164)), 53)
for p in range(10):
    A(f"v_add_f32 v{154+p}, 1.0, v{154+p}")
    bf16r(154+p, 10)
A("s_branch .Laux_wait")
A.label(".Lpre_t4")
A("s_cmp_ge_u32 s2, 248")
A("s_cbranch_scc1 .Laux_wait")
mk_srd(60, 88, 1536*640*2)
A("s_sub_u32 s28, s2, 208")
A("s_lshl_b32 s28, s28, 5")
A("s_mul_i32 s31, s27, 491520")
A("s_add_u32 s28, s28, s31")
A("v_lshrrev_b32 v8, 1, v1")
A("v_mul_u32_u24 v8, 1280, v8")
A("v_and_b32 v9, 1, v1")
A("v_lshl_add_u32 v8, v9, 4, v8")
for p in range(12):
    A(f"buffer_load_dwordx4 v[{64+4*p}:{67+4*p}], v8, s[60:63], s28 offen")
    A(f"s_add_u32 s28, s28, {32*1280}")
A.label(".Laux_wait")
poll_counter(128, 256, 52, 53)
if POOL and not FLEX:
    A("s_cmp_lg_u32 s27, 0")
    A("s_cbranch_scc1 .Lfeed_done")
    A("s_and_b32 s54, s25, 3")
    A("s_lshl_b32 s54, s54, 6")
    A("s_lshr_b32 s55, s25, 2")
    A("s_lshl_b32 s55, s55, 2")
    A("s_add_u32 s54, s54, s55")
    A("s_add_u32 s54, s54, 16")
    A(f"v_mov_b32 v8, {PQ}")
    A("s_mov_b32 s44, 0")
    A("s_mov_b32 s47, 0")
    A("s_mov_b32 s48, 0")
    A.label(".Lfeed")
    A("ds_read_b32 v9, v8")
    A("s_waitcnt lgkmcnt(0)")
    A("v_readfirstlane_b32 s45, v9")
    A("s_nop 0")
    A(f"s_add_u32 s45, s45, {BATCH}")
    A("s_cmp_le_u32 s45, s44")
    A("s_cbranch_scc0 .Lfeed_get")
    A("s_sleep 4")
    A("s_branch .Lfeed")
    A.label(".Lfeed_get")
    A("s_sub_u32 s49, s44, s47")
    A(f"s_cmp_ge_u32 s49, {4*(CAP-S_STATIC) - BATCH}")
    A("s_cbranch_scc1 .Lfeed_fin")
    A(f"v_mov_b32 v10, {BATCH}")
    A("s_mov_b64 exec, 1")
    A("buffer_atomic_add v10, v52, s[12:15], s54 offen sc0")
    exec_all()
    A("s_waitcnt vmcnt(0)")
    A("v_readfirstlane_b32 s46, v10")
    A("s_nop 0")
    A(f"s_cmp_ge_u32 s46, {2*POOL}")
    A("s_cbranch_scc1 .Lfeed_fin")
    A(f"s_cmp_ge_u32 s46, {POOL}")
    A("s_cselect_b32 s49, 1, 0")
    A("s_cmp_eq_u32 s49, s48")
    A("s_cbranch_scc1 .Lfeed_same")
    A("s_mov_b32 s48, s49")
    A("s_mov_b32 s47, s44")
    A.label(".Lfeed_same")
    A("v_add_u32 v10, s46, v1")
    A("v_add_u32 v11, s44, v1")
    A("v_and_b32 v11, 31, v11")
    A("v_lshlrev_b32 v11, 2, v11")
    A(f"v_add_u32 v11, {PQE}, v11")
    A(f"s_mov_b64 exec, {(1<<BATCH)-1}")
    A("ds_write_b32 v11, v10")
    exec_all()
    A("s_waitcnt lgkmcnt(0)")
    A(f"s_add_u32 s44, s44, {BATCH}")
    A("v_mov_b32 v10, s44")
    A("ds_write_b32 v8, v10 offset:4")
    A("s_branch .Lfeed")
    A.label(".Lfeed_fin")
    A("v_mov_b32 v10, 1")
    A("ds_write_b32 v8, v10 offset:8")
    A.label(".Lfeed_done")
A("s_waitcnt vmcnt(0) lgkmcnt(0)")
A("s_branch .Ltail")

A.label(".Lstream")
A("s_barrier")
mk_srd(4, 74, KV_BYTES)
stamp(0)
if os.environ.get('REMAP'):
    A("s_lshr_b32 s27, s26, 1")
    A("s_and_b32 s28, s26, 1")
    A("s_lshl_b32 s28, s28, 3")
    A("s_or_b32 s27, s27, s28")
    A("s_lshl_b32 s27, s27, 2")
else:
    A("s_lshl_b32 s27, s26, 2")
A("s_add_u32 s27, s27, s20")
A(f"s_mul_i32 s24, s25, {2*HEADB}")
A(f"s_mul_i32 s23, s20, {RING}")
A("s_mov_b32 s22, 0")
A("s_mov_b32 s21, 0")
A("s_mov_b32 s67, 0")
A(f"s_mov_b32 s68, {6-int(os.environ.get('LOOK','6'))}")
A(f"s_mul_i32 s32, s20, {SCW}")
A(f"s_add_u32 s32, s32, {LDS_SC}")
A("s_and_b32 s54, s25, 3")
A("s_lshl_b32 s54, s54, 6")
A("s_lshr_b32 s55, s25, 2")
A("s_lshl_b32 s55, s55, 2")
A("s_add_u32 s54, s54, s55")
A("s_add_u32 s54, s54, 16")
A("s_mov_b32 s44, 0")
A("s_mov_b32 s45, 0")
A("s_mov_b32 s46, -2")
A("s_mov_b32 s49, 0x7fffffff")
A("s_mov_b32 s47, 0")
A("s_mov_b32 s48, 0")
A("v_mov_b32 v52, 0")
A("v_mov_b32 v63, 0")
for i in range(3):
    A(f"v_add_u32 v{2+i}, {64*i}, v1")
    A(f"v_mul_u32_u24 v{2+i}, 2731, v{2+i}")
    A(f"v_lshrrev_b32 v{2+i}, 16, v{2+i}")
    A(f"v_and_b32 v{2+i}, 6, v{2+i}")
    A(f"v_lshlrev_b32 v{2+i}, 4, v{2+i}")
    A(f"v_lshlrev_b32 v5, 4, v1")
    A(f"v_xor_b32 v{2+i}, v{2+i}, v5")

def issue_tile(sd, so, tile):
    A(f"s_cmp_lt_u32 s{sd}, 1024")
    A("s_cselect_b32 s4, s16, s18")
    A("s_cselect_b32 s5, s17, s19")
    A(f"s_add_u32 s29, s{so}, {6144*tile}")
    A("s_add_u32 m0, s23, s22")
    A("s_add_u32 s30, s29, 3072")
    for i in range(3):
        A(f"buffer_load_dwordx4 v{2+i}, s[4:7], s29 offen offset:{1024*i} nt lds")
    A("s_add_u32 m0, m0, 3072")
    A("s_nop 0")
    for i in range(3):
        A(f"buffer_load_dwordx4 v{2+i}, s[4:7], s30 offen offset:{1024*i} nt lds")
    A("s_add_u32 s22, s22, 6144")
    A(f"s_cmp_eq_u32 s22, {RING}")
    A("s_cselect_b32 s22, 0, s22")

def take_ticket(t):
    A(f"v_mov_b32 v62, {PQ}")
    A("v_mov_b32 v59, 1")
    A("s_mov_b64 exec, 1")
    A("ds_add_rtn_u32 v59, v62, v59")
    exec_all()
    A("s_waitcnt lgkmcnt(0)")
    A("v_readfirstlane_b32 s31, v59")
    A.label(f".Lt_spin{t}")
    A("ds_read_b64 v[58:59], v62 offset:4")
    A("s_waitcnt lgkmcnt(0)")
    A("v_readfirstlane_b32 s28, v58")
    A("v_readfirstlane_b32 s29, v59")
    A("s_nop 0")
    A("s_cmp_lt_u32 s31, s28")
    A(f"s_cbranch_scc1 .Lt_ok{t}")
    A("s_cmp_lg_u32 s29, 0")
    A(f"s_cbranch_scc1 .Lt_none{t}")
    A("s_sleep 1")
    A(f"s_branch .Lt_spin{t}")
    A.label(f".Lt_none{t}")
    A("s_mov_b32 s46, 0x7fffffff")
    A(f"s_branch .Lt_done{t}")
    A.label(f".Lt_ok{t}")
    A("s_and_b32 s31, s31, 31")
    A("s_lshl_b32 s31, s31, 2")
    A(f"s_add_u32 s31, s31, {PQE}")
    A("v_mov_b32 v59, s31")
    A("ds_read_b32 v59, v59")
    A("s_waitcnt lgkmcnt(0)")
    A("v_readfirstlane_b32 s46, v59")
    A("s_nop 0")
    A.label(f".Lt_done{t}")

GEN = [0]
def gen_next(sd, so):
    GEN[0] += 1; t = GEN[0]
    A.label(f".Lg_top{t}")
    A("s_cmp_ge_u32 s44, 2")
    A(f"s_cbranch_scc1 .Lg_v{t}")
    A(f"s_cmp_lt_u32 s45, {S_STATIC}")
    A(f"s_cbranch_scc1 .Lg_static{t}")
    if FLEX:
        A("s_cmp_lg_u32 s49, 0x7fffffff")
        A(f"s_cbranch_scc1 .Lg_bk{t}")
        A(f"v_mov_b32 v62, {BIASW}")
        A.label(f".Lg_bs{t}")
        A("ds_read_b32 v59, v62")
        A("s_waitcnt lgkmcnt(0)")
        A("v_readfirstlane_b32 s49, v59")
        A("s_nop 0")
        A("s_cmp_eq_u32 s49, 0x7fffffff")
        A(f"s_cbranch_scc0 .Lg_bk{t}")
        A("s_sleep 1")
        A(f"s_branch .Lg_bs{t}")
        A.label(f".Lg_bk{t}")
        A("s_cmp_eq_u32 s44, 0")
        A(f"s_cselect_b32 s28, {BA}, {BB}")
        A("s_mul_i32 s28, s28, s49")
        A("s_add_u32 s28, s28, 4")
        A("s_and_b32 s29, s2, 1")
        A("s_cmp_eq_u32 s29, 0")
        A("s_cselect_b32 s29, 0, s28")
        A("s_cselect_b32 s30, s28, 8")
        A("s_sub_u32 s28, s45, 7")
        A("s_lshl_b32 s28, s28, 2")
        A("s_add_u32 s28, s28, s20")
        A("s_add_u32 s28, s28, s29")
        A("s_cmp_ge_u32 s28, s30")
        A(f"s_cbranch_scc1 .Lg_next{t}")
        A("s_add_u32 s45, s45, 1")
        A("s_lshr_b32 s29, s26, 1")
        A("s_lshl_b32 s29, s29, 3")
        A("s_add_u32 s28, s28, s29")
        A("s_add_u32 s28, s28, 448")
        A(f"s_branch .Lg_rec{t}")
    elif POOL:
        A("s_cmp_eq_u32 s44, 0")
        A("s_cselect_b32 s29, s47, s48")
        A(f"s_cmp_ge_u32 s29, {CAP}")
        A(f"s_cbranch_scc1 .Lg_next{t}")
        A("s_cmp_lg_u32 s46, -2")
        A(f"s_cbranch_scc1 .Lg_have{t}")
        take_ticket(t)
        A.label(f".Lg_have{t}")
        A(f"s_mul_i32 s28, s44, {POOL}")
        A("s_sub_u32 s28, s46, s28")
        A(f"s_cmp_ge_u32 s28, {POOL}")
        A(f"s_cbranch_scc1 .Lg_next{t}")
        A(f"s_add_u32 s28, s28, {64*S_STATIC}")
        A("s_mov_b32 s46, -2")
        A(f"s_branch .Lg_rec{t}")
    A.label(f".Lg_next{t}")
    A("s_add_u32 s44, s44, 1")
    A("s_mov_b32 s45, 0")
    A(f"s_branch .Lg_top{t}")
    A.label(f".Lg_static{t}")
    A(f"s_mul_i32 s28, s27, {S_STATIC}")
    A("s_add_u32 s28, s28, s45")
    A("s_add_u32 s45, s45, 1")
    A.label(f".Lg_rec{t}")
    A("s_cmp_eq_u32 s44, 0")
    A("s_cselect_b32 s29, s47, s48")
    A("s_lshl_b32 s30, s44, 4")
    A("s_add_u32 s30, s30, s29")
    A("s_add_u32 s29, s29, 1")
    A("s_cmp_eq_u32 s44, 0")
    A("s_cselect_b32 s47, s29, s47")
    A("s_cselect_b32 s48, s48, s29")
    A("s_mov_b32 m0, s30")
    A("s_nop 0")
    A("v_writelane_b32 v63, s28, m0")
    A(f"s_branch .Lg_emit{t}")
    A.label(f".Lg_v{t}")
    A("s_cmp_ge_u32 s44, 4")
    A(f"s_cbranch_scc1 .Lg_end{t}")
    A("s_cmp_eq_u32 s44, 2")
    A("s_cselect_b32 s29, s47, s48")
    A("s_cmp_lt_u32 s45, s29")
    A(f"s_cbranch_scc1 .Lg_rep{t}")
    A("s_add_u32 s44, s44, 1")
    A("s_mov_b32 s45, 0")
    A(f"s_branch .Lg_v{t}")
    A.label(f".Lg_rep{t}")
    A("s_sub_u32 s30, s44, 2")
    A("s_lshl_b32 s30, s30, 4")
    A("s_add_u32 s30, s30, s45")
    A("s_add_u32 s45, s45, 1")
    A("s_nop 1")
    A("v_readlane_b32 s28, v63, s30")
    A.label(f".Lg_emit{t}")
    A(f"s_lshl_b32 s29, s44, 9")
    A(f"s_or_b32 s{sd}, s29, s28")
    A("s_and_b32 s29, s44, 1")
    A(f"s_mul_i32 s29, s29, {HEADB}")
    A("s_mul_i32 s28, s28, 24576")
    A("s_add_u32 s28, s28, s29")
    A(f"s_add_u32 s{so}, s28, s24")
    A(f"s_branch .Lg_out{t}")
    A.label(f".Lg_end{t}")
    A(f"s_mov_b32 s{sd}, -1")
    A(f"s_mov_b32 s{so}, 0x80000000")
    A.label(f".Lg_out{t}")

def do_fill():
    gen_next(60, 63)
    gen_next(61, 64)
    for t in range(6):
        if t >= FILLW:
            A(f"s_waitcnt vmcnt({6*(FILLW-1)})")
        if t < 4: issue_tile(60, 63, t)
        else: issue_tile(61, 64, t-4)
    if os.environ.get('RPF', '0') == '1':
        A(f"s_waitcnt vmcnt({6*(FILLW-1)})")
        for tl in range(2):
            A(f"s_add_u32 s29, s64, {6144*(2+tl)}")
            A("s_add_u32 s30, s29, 3072")
            for i in range(6):
                so = "s29" if i < 3 else "s30"
                r = 200 + 24*tl + 4*i
                A(f"buffer_load_dwordx4 v[{r}:{r+3}], v{2+(i%3)}, s[4:7], {so} offen offset:{1024*(i%3)} nt")
        A("s_mov_b32 s68, 2")
    stamp(9)
GATE = os.environ.get('GATE', 'a')
if GATE == 'a':
    A("s_cmp_ge_u32 s2, 40")
    A("s_cbranch_scc1 .Lnogate")
    A(f"v_mov_b32 v53, {LDS_MISC + 1024 + 12}")
    A("s_mov_b32 s31, 4")
elif GATE == 'm':
    A("s_cmp_ge_u32 s2, 64")
    A(f"s_mov_b32 s29, {MFLAG}")
    A(f"s_cselect_b32 s30, s29, {LDS_MISC + 1024 + 12}")
    A("s_cselect_b32 s31, 1, 4")
    A("v_mov_b32 v53, s30")
elif GATE == 'h':
    A("s_cmp_ge_u32 s2, 64")
    A("s_cbranch_scc1 .Lnogate")
    A(f"v_mov_b32 v53, {LDS_MISC + 1024 + 12}")
    A("s_mov_b32 s31, 4")
A.label(".Lgate")
A("ds_read_b32 v54, v53")
A("s_waitcnt lgkmcnt(0)")
A("v_readfirstlane_b32 s28, v54")
A("s_nop 0")
A("s_cmp_ge_u32 s28, s31")
A("s_cbranch_scc1 .Lnogate")
A("s_sleep 1")
A("s_branch .Lgate")
A.label(".Lnogate")
do_fill()
A("v_lshrrev_b32 v6, 4, v1")
A("v_and_b32 v7, 15, v1")
A("v_lshlrev_b32 v8, 4, v6")
A("v_and_b32 v9, 6, v7")
A("v_xor_b32 v10, v6, v9")
A("v_xor_b32 v11, 4, v10")
A("v_mul_u32_u24 v12, 384, v7")
A("v_add_u32 v12, s23, v12")
A("v_lshl_add_u32 v10, v10, 4, v12")
A("v_lshl_add_u32 v11, v11, 4, v12")
A("v_bfe_u32 v40, v1, 2, 2")
A("v_and_b32 v41, 3, v1")
A("v_and_b32 v42, 1, v6")
A("v_lshlrev_b32 v42, 1, v42")
A("v_lshrrev_b32 v43, 1, v40")
A("v_or_b32 v42, v42, v43")
A("v_lshl_add_u32 v43, v6, 2, v40")
A("v_mul_u32_u24 v43, 384, v43")
A("v_lshl_add_u32 v43, v41, 3, v43")
A("v_add_u32 v43, s23, v43")
for bb in range(4):
    A(f"v_xor_b32 v44, {bb}, v42")
    A(f"v_lshl_add_u32 v{12+bb}, v44, 5, v43")
stamp(1)
A(f"v_mov_b32 v53, {QFLAG}")
A("s_cmp_lg_u32 s20, 0")
A("s_cbranch_scc1 .Lq_wait")
get_nonce(52, 54)
stamp(2)
A("s_mul_i32 s31, s25, 1536")
A(f"s_add_u32 s31, s31, {WS_QT}")
A("v_lshlrev_b32 v55, 4, v1")
A("v_min_u32 v56, 496, v55")
def issue_q():
    A(f"buffer_load_dwordx4 v[16:19], v55, s[8:11], s31 offen sc1")
    A(f"buffer_load_dwordx4 v[20:23], v56, s[8:11], s31 offen offset:1024 sc1")
poll_tagged(issue_q, [17, 19, 21, 23], 44)
A("v_mov_b32 v17, v18")
A("v_mov_b32 v21, v22")
A("v_lshrrev_b32 v55, 1, v55")
A("v_lshrrev_b32 v56, 1, v56")
A(f"v_add_u32 v55, {QLDS}, v55")
A(f"v_add_u32 v56, {QLDS + 512}, v56")
A("ds_write_b64 v55, v[16:17]")
A("ds_write_b64 v56, v[20:21]")
A("s_waitcnt lgkmcnt(0)")
A("v_mov_b32 v54, 1")
A("ds_write_b32 v53, v54")
A.label(".Lq_wait")
A("ds_read_b32 v54, v53")
A("s_waitcnt lgkmcnt(0)")
A("v_readfirstlane_b32 s28, v54")
A("s_nop 0")
A("s_cmp_eq_u32 s28, 1")
A("s_cbranch_scc1 .Lq_ok")
A("s_sleep 1")
A("s_branch .Lq_wait")
A.label(".Lq_ok")
A(f"v_add_u32 v55, {QLDS}, v8")
for st in range(6):
    A(f"ds_read_b128 v[{16+4*st}:{19+4*st}], v55 offset:{64*st}")
for st in range(6):
    A(f"ds_read_b128 v[{176+4*st}:{179+4*st}], v55 offset:{384+64*st}")
A("s_waitcnt lgkmcnt(0)")
QA = 64; KB = 16; ACC = 40
def build_qa(src):
    for t in range(4):
        A(f"v_cmp_eq_u32 vcc, {4*t}, v7")
        A("s_nop 1")
        for r in range(24):
            A(f"v_cndmask_b32 v{QA+24*t+r}, 0, v{src+r}, vcc")

OACC = 64; VB = 112
LOOK = int(os.environ.get('LOOK', '6'))
RPF = os.environ.get('RPF', '0') == '1'
KPH = [False]
def adv_rd():
    A("s_add_u32 s21, s21, 6144")
    A(f"s_cmp_eq_u32 s21, {RING}")
    A("s_cselect_b32 s21, 0, s21")
def mid_issue(j):
    if j == 2:
        gen_next(62, 65)
    tt = j + LOOK
    sk = None
    if LOOK < 6:
        sk = L("sk")
        A(f"s_cmp_lt_u32 s67, {6-LOOK}")
        A("s_addc_u32 s67, s67, 0")
        A(f"s_cbranch_scc1 {sk}") if False else None
    if LOOK < 6:
        A(f"s_cmp_le_u32 s67, {6-LOOK}")
        A(f"s_cselect_b32 s31, 1, 0")
        A("s_cmp_eq_u32 s68, 0")
        A(f"s_cbranch_scc1 {sk}_go")
        A("s_sub_u32 s68, s68, 1")
        A(f"s_branch {sk}")
        A.label(f"{sk}_go")
    if RPF and j < 2 and KPH[0]:
        nm = L("rp"); dn = L("rpd")
        A("s_cmp_eq_u32 s68, 0")
        A(f"s_cbranch_scc1 {nm}")
        A("s_sub_u32 s68, s68, 1")
        A("s_add_u32 s28, s23, s22")
        A("v_lshlrev_b32 v58, 4, v1")
        A("v_add_u32 v58, s28, v58")
        for i in range(6):
            r = 200 + 24*j + 4*i
            A(f"ds_write_b128 v58, v[{r}:{r+3}] offset:{1024*i}")
        A("s_add_u32 s22, s22, 6144")
        A(f"s_cmp_eq_u32 s22, {RING}")
        A("s_cselect_b32 s22, 0, s22")
        A(f"s_branch {dn}")
        A.label(nm)
        issue_tile(61, 64, j + 2)
        A.label(dn)
        return
    if tt < 4: issue_tile(60, 63, tt)
    elif tt < 8: issue_tile(61, 64, tt - 4)
    else: issue_tile(62, 65, tt - 8)
    if sk: A.label(sk)
def rotate():
    A("s_mov_b32 s60, s61"); A("s_mov_b32 s63, s64")
    A("s_mov_b32 s61, s62"); A("s_mov_b32 s64, s65")
    A("s_add_u32 s66, s66, 1")

def issue_ml(hsel):
    A(f"buffer_load_dword v57, v52, s[12:15], 0 offen offset:128 sc1")
    A("s_lshl_b32 s35, s25, 10")
    A(f"s_add_u32 s35, s35, {WS_ML + 512*hsel}")
    A("v_lshlrev_b32 v56, 3, v1")
    A(f"buffer_load_dwordx2 v[50:51], v56, s[8:11], s35 offen sc1")

def kphase(hsel):
    lp = L("kloop")
    A("v_mov_b32 v54, 0xff800000")
    A("v_mov_b32 v45, 0")
    A("v_lshlrev_b32 v55, 1, v1")
    A(f"s_add_u32 s34, s32, {4*SCW*hsel}")
    A("v_add_u32 v55, s34, v55")
    A("s_mov_b32 s66, 0")
    A.label(lp)
    for t in range(4):
        A(f"s_waitcnt vmcnt({6*(LOOK-1)})")
        A("v_add_u32 v160, s21, v10")
        A("v_add_u32 v161, s21, v11")
        for st in range(6):
            A(f"ds_read_b128 v[{KB+4*st}:{KB+4*st+3}], v{160 + (st&1)} offset:{(st>>1)*128}")
        adv_rd()
        A("s_waitcnt lgkmcnt(0)")
        mid_issue(t)
        for st in range(6):
            c = "0" if (t == 0 and st == 0) else f"v[{ACC}:{ACC+3}]"
            A(f"v_mfma_f32_16x16x32_bf16 v[{ACC}:{ACC+3}], v[{QA+24*t+4*st}:{QA+24*t+4*st+3}], v[{KB+4*st}:{KB+4*st+3}], {c}")
    if hsel == 1:
        sk = L("skip")
        A(f"s_cmp_lg_u32 s66, {S_STATIC-3}")
        A(f"s_cbranch_scc1 {sk}")
        issue_ml(0)
        A.label(sk)
    A("s_nop 7")
    A("s_nop 1")
    A(f"v_cvt_pk_bf16_f32 v44, v{ACC}, v{ACC}")
    A("v_lshlrev_b32 v44, 16, v44")
    A(f"v_mul_f32 v44, {SCALE}, v44")
    A("v_cvt_pk_bf16_f32 v44, v44, v44")
    A("ds_write_b16 v55, v44")
    A("v_lshlrev_b32 v44, 16, v44")
    A("v_max_f32 v46, v54, v44")
    A("v_sub_f32 v47, v54, v46")
    A("v_sub_f32 v48, v44, v46")
    A(f"v_mul_f32 v47, {LOG2E}, v47")
    A(f"v_mul_f32 v48, {LOG2E}, v48")
    A("v_exp_f32 v47, v47")
    A("v_exp_f32 v48, v48")
    A("v_mov_b32 v54, v46")
    A("v_fma_f32 v45, v45, v47, v48")
    A("v_add_u32 v55, 128, v55")
    rotate()
    A("s_lshr_b32 s28, s60, 9")
    A(f"s_cmp_eq_u32 s28, {hsel}")
    A(f"s_cbranch_scc1 {lp}")
    A("v_mov_b32 v44, v54")
    wave_reduce(44, "v_max_f32")
    A("v_sub_f32 v47, v54, v44")
    A(f"v_mul_f32 v47, {LOG2E}, v47")
    A("v_exp_f32 v47, v47")
    A("s_nop 0")
    A("v_mul_f32 v45, v45, v47")
    wave_reduce(45, "v_add_f32")
    desentinel(44, 46); desentinel(45, 46)
    A("s_lshl_b32 s35, s25, 10")
    A("s_lshl_b32 s36, s27, 3")
    A("s_add_u32 s35, s35, s36")
    A(f"s_add_u32 s35, s35, {WS_ML + 512*hsel}")
    A("s_mov_b64 exec, 1")
    A(f"buffer_store_dwordx2 v[44:45], v52, s[8:11], s35 offen sc1")
    exec_all()

def vphase(hsel):
    ok = L("mlok"); slow = L("mlslow")
    if hsel == 1 and PREF:
        A("s_getpc_b64 s[28:29]")
        A(".Lpc_ref:")
        A("v_lshlrev_b32 v58, 4, v1")
        A("s_lshl_b32 s30, s20, 12")
        A("v_add_u32 v58, s30, v58")
        A("v_add_u32 v58, .Ltail-.Lpc_ref, v58")
        for i in range(4):
            A("v_min_u32 v59, .Lend-.Lpc_ref-12, v58")
            A("global_load_dwordx4 v[252:255], v59, s[28:29]")
            A("v_add_u32 v58, 1024, v58")
    A("v_cmp_gt_u32 vcc, 256, v57")
    A(f"s_cbranch_vccnz {slow}")
    A("v_max_u32 v53, v50, v51")
    A("v_cmp_eq_u32 vcc, -1, v53")
    A(f"s_cbranch_vccz {ok}")
    A.label(slow)
    poll_counter(128, 256, 52, 53)
    poll_loop(lambda: issue_ml(hsel), [50, 51], 53)
    A.label(ok)
    A("v_mov_b32 v44, v50")
    wave_reduce(44, "v_max_f32")
    A("v_sub_f32 v45, v50, v44")
    A(f"v_mul_f32 v45, {LOG2E}, v45")
    A("v_exp_f32 v45, v45")
    A("s_nop 0")
    A("v_mul_f32 v45, v45, v51")
    wave_reduce(45, "v_add_f32")
    A(f"s_add_u32 s34, s32, {4*SCW*hsel}")
    A("v_lshlrev_b32 v55, 1, v1")
    A("v_add_u32 v55, s34, v55")
    A("v_and_b32 v30, 31, v1")
    A("v_bfe_u32 v31, v30, 2, 2")
    A("v_lshlrev_b32 v31, 3, v31")
    A("v_bfe_u32 v32, v30, 4, 1")
    A("v_lshl_add_u32 v31, v32, 2, v31")
    A("v_and_b32 v32, 3, v30")
    A("v_add_u32 v31, v31, v32")
    A("v_lshlrev_b32 v31, 1, v31")
    A("v_lshrrev_b32 v32, 5, v1")
    A("v_lshl_add_u32 v31, v32, 6, v31")
    A("v_add_u32 v31, s34, v31")
    A("s_mov_b32 s66, 0")
    plp = L("ploop")
    A.label(plp)
    A("ds_read_u16 v47, v55")
    A("v_add_u32 v55, 128, v55")
    A("s_waitcnt lgkmcnt(0)")
    A("v_lshlrev_b32 v47, 16, v47")
    A("v_sub_f32 v47, v47, v44")
    A(f"v_mul_f32 v47, {LOG2E}, v47")
    A("v_exp_f32 v47, v47")
    A("v_mov_b32 v49, v45")
    fdiv(47, 47, 49, 56, 53)
    A("v_cvt_pk_bf16_f32 v47, v47, v47")
    A("ds_write_b16 v31, v47")
    A("v_add_u32 v31, 128, v31")
    A("s_add_u32 s66, s66, 1")
    A(f"s_cmp_lt_u32 s66, s{47+hsel}")
    A(f"s_cbranch_scc1 {plp}")
    A("v_lshlrev_b32 v55, 4, v6")
    A("v_add_u32 v55, s34, v55")
    for i in range(48):
        A(f"v_mov_b32 v{OACC+i}, 0")
    A("s_waitcnt lgkmcnt(0)")
    A("s_mov_b32 s66, 0")
    lp = L("vloop")
    A.label(lp)
    for step in range(2):
        A(f"ds_read_b128 v[20:23], v55 offset:{64*step}")
        for h in range(2):
            A(f"s_waitcnt vmcnt({6*(LOOK-1)})")
            for bb in range(4):
                A(f"v_add_u32 v{160+bb}, s21, v{12+bb}")
            for b in range(12):
                A(f"ds_read_b64_tr_b16 v[{VB+4*b+2*h}:{VB+4*b+2*h+1}], v{160+(b&3)} offset:{(b>>2)*128}")
            adv_rd()
            A("s_waitcnt lgkmcnt(0)")
            mid_issue(2*step + h)
        for b in range(12):
            A(f"v_mfma_f32_16x16x32_bf16 v[{OACC+4*b}:{OACC+4*b+3}], v[20:23], v[{VB+4*b}:{VB+4*b+3}], v[{OACC+4*b}:{OACC+4*b+3}]")
    if hsel == 0:
        sk = L("skip")
        A(f"s_cmp_lg_u32 s66, {S_STATIC-3}")
        A(f"s_cbranch_scc1 {sk}")
        issue_ml(1)
        A.label(sk)
    A("v_add_u32 v55, 128, v55")
    rotate()
    A("s_lshr_b32 s28, s60, 9")
    A(f"s_cmp_eq_u32 s28, {2+hsel}")
    A(f"s_cbranch_scc1 {lp}")
    A("s_nop 7")
    A("s_nop 1")
    A("v_lshlrev_b32 v56, 2, v1")
    A("v_add_u32 v56, s34, v56")
    A("s_mov_b64 exec, 0xffff")
    for b in range(12):
        A(f"ds_write_b32 v56, v{OACC+4*b} offset:{64*b}")
    exec_all()

if STAMP:
    A("s_getreg_b32 s69, hwreg(HW_REG_XCC_ID)")
    A("s_getreg_b32 s70, hwreg(HW_REG_HW_ID)") if False else A("s_mov_b32 s70, 0")
    sval(31, 69, 70)
stamp(3)
A("s_waitcnt vmcnt(0)")
build_qa(16)
KPH[0] = True
kphase(0)
KPH[0] = False
stamp(4)
build_qa(176)
kphase(1)
stamp(5)
vphase(0)
stamp(6)
vphase(1)
stamp(7)
A("s_waitcnt vmcnt(0) lgkmcnt(0)")
A("s_branch .Ltail")

A.label(".Ltail")
TIGHT[0] = os.environ.get('TIGHT', '0') == '1'
A("s_barrier")
stamp(8)
A("v_lshlrev_b32 v3, 2, v1")
A("v_lshlrev_b32 v4, 2, v0")
A("v_mov_b32 v52, 0")
A("s_sub_u32 s27, s20, 4")
A("s_cmp_ge_u32 s20, 6")
A("s_cbranch_scc1 .Lt1_done")
A("v_cmp_le_u32 vcc, 192, v0")
A(f"v_mov_b32 v6, {4*SCW - 768}")
A("s_nop 0")
A("v_cndmask_b32 v5, 0, v6, vcc")
A("v_add_u32 v5, v5, v4")
A(f"v_add_u32 v5, {LDS_SC}, v5")
for w in range(4):
    A(f"ds_read_b32 v{20+w}, v5 offset:{SCW*w}")
A("s_waitcnt lgkmcnt(0)")
A("v_add_f32 v20, v20, v21")
A("v_add_f32 v22, v22, v23")
A("v_add_f32 v20, v20, v22")
desentinel(20, 24)
A("s_mul_i32 s28, s2, 1536")
A(f"s_add_u32 s28, s28, {WS_OP}")
A("buffer_store_dword v20, v4, s[8:11], s28 offen sc0 sc1")
A.label(".Lt1_done")
A("s_cmp_ge_u32 s2, 160")
A("s_cbranch_scc1 .Lt3")
A("s_mul_hi_u32 s30, s2, 0x1999999a")
A("s_cmp_ge_u32 s20, 6")
A("s_cbranch_scc1 .Lt2_b")
A("s_mul_i32 s28, s30, 24576")
A(f"s_add_u32 s28, s28, {WS_OP}")
def iss():
    for j in range(16):
        A(f"s_add_u32 s29, s28, {1536*j}")
        A(f"buffer_load_dword v{20+j}, v4, s[8:11], s29 offen sc1")
poll_loop(iss, list(range(20, 36)), 53)
for j in range(1, 16):
    A(f"v_add_f32 v20, v20, v{20+j}")
bf16r(20, 21)
A("ds_write_b32 v4, v20 offset:0")
A("s_waitcnt lgkmcnt(0)")
A.label(".Lt2_b")
stamp(9)
A("s_barrier")
A("s_cmp_lt_u32 s20, 4")
A("s_cbranch_scc1 .Lt2_c")
A("v_lshrrev_b32 v8, 3, v1")
A("s_mul_i32 s28, s27, 96")
A("v_add_u32 v8, s28, v8")
A("v_lshlrev_b32 v8, 2, v8")
for p in range(12):
    A(f"ds_read_b32 v{20+p}, v8 offset:{32*p}")
A("s_waitcnt lgkmcnt(0)")
gemv_fma8(64, 12, 40, 20, 8)
reduce8_rg8(40)
part_addr(8, 3, 9, 4096)
exec_low(3)
A("ds_write_b64 v8, v[40:41]")
exec_all()
A("s_waitcnt lgkmcnt(0)")
A.label(".Lt2_c")
A("s_barrier")
A("s_cmp_lg_u32 s20, 4")
A("s_cbranch_scc1 .Lend")
for w in range(4):
    A(f"ds_read_b32 v{20+w}, v3 offset:{4096 + 256*w}")
A("s_waitcnt lgkmcnt(0)")
A("v_add_f32 v20, v20, v21")
A("v_add_f32 v22, v22, v23")
A("v_add_f32 v20, v20, v22")
desentinel(20, 8)
A("s_lshl_b32 s28, s2, 8")
A(f"s_add_u32 s28, s28, {WS_AP}")
A("buffer_store_dword v20, v3, s[8:11], s28 offen sc0 sc1")
stamp(10)
A("s_branch .Lend")

A.label(".Lt3")
A("s_cmp_ge_u32 s2, 208")
A("s_cbranch_scc1 .Lt4")
mk_srd(44, 72, 1280)
A("v_lshlrev_b32 v2, 1, v0")
A("buffer_load_ushort v10, v2, s[44:47], 0 offen")
A("buffer_load_ushort v11, v2, s[44:47], 0 offen offset:1024")
A("v_cmp_gt_u32 vcc, 128, v0")
A("v_mov_b32 v6, 2048")
A("s_nop 0")
A("v_cndmask_b32 v5, 0, v6, vcc")
A("v_add_u32 v5, v5, v4")
def iss():
    A(f"s_mov_b32 s29, {WS_MOD + 2560*2}")
    A(f"buffer_load_dword v12, v4, s[8:11], s29 offen sc1")
    A(f"buffer_load_dword v13, v5, s[8:11], s29 offen sc1")
    for j in range(16):
        A(f"s_mov_b32 s29, {WS_AP + 2560*j}")
        A(f"buffer_load_dword v{20+j}, v4, s[8:11], s29 offen sc1")
        A(f"buffer_load_dword v{170+j}, v5, s[8:11], s29 offen sc1")
poll_loop(iss, [12, 13] + list(range(20, 36)) + list(range(170, 186)), 53)
stamp(11)
for j in range(1, 16):
    A(f"v_add_f32 v20, v20, v{20+j}")
    A(f"v_add_f32 v170, v170, v{170+j}")
A("v_mov_b32 v21, v170")
for i in range(2):
    a = 20 + i
    bf16r(a, 8)
    A(f"v_mul_f32 v{a}, v{a}, v{12+i}")
    bf16r(a, 8)
    A(f"v_lshlrev_b32 v{10+i}, 16, v{10+i}")
    A(f"v_add_f32 v{10+i}, v{10+i}, v{a}")
    bf16r(10+i, 8)
    A(f"ds_write_b32 v4, v{10+i} offset:{2048*i}")
A("s_waitcnt lgkmcnt(0)")
A("s_barrier")
A("s_cmp_lt_u32 s20, 4")
A("s_cbranch_scc1 .Lt3_c")
for p in range(10):
    A(f"ds_read_b32 v{28+p}, v3 offset:{256*p}")
A("v_lshrrev_b32 v8, 2, v1")
A("s_mul_i32 s28, s27, 160")
A("v_add_u32 v8, s28, v8")
A("v_lshlrev_b32 v8, 2, v8")
for p in range(10):
    A(f"ds_read_b32 v{16+p}, v8 offset:{64*p}")
A("s_waitcnt lgkmcnt(0)")
A("v_add_f32 v8, v28, v29")
for p in range(2, 10):
    A(f"v_add_f32 v8, v8, v{28+p}")
wave_reduce(8, "v_add_f32")
A("v_mul_f32 v8, 0x3acccccd, v8")
A("v_sub_f32 v10, v28, v8")
A("v_mul_f32 v9, v10, v10")
for p in range(1, 10):
    A(f"v_sub_f32 v10, v{28+p}, v8")
    A("v_fma_f32 v9, v10, v10, v9")
wave_reduce(9, "v_add_f32")
A("v_mul_f32 v9, 0x3acccccd, v9")
bf16r(8, 10); bf16r(9, 10)
A("v_add_f32 v9, 0x3727c5ac, v9")
bf16r(9, 10)
A("v_sqrt_f32 v9, v9")
A("s_nop 0")
bf16r(9, 10)
for p in range(10):
    d = 16 + p
    A(f"v_sub_f32 v{d}, v{d}, v8")
    bf16r(d, 10)
    A(f"v_mov_b32 v11, v9")
    fdiv(d, d, 11, 12, 13)
    bf16r(d, 10)
    A(f"v_mul_f32 v{d}, v{d}, v{154+p}")
    bf16r(d, 10)
    A(f"v_add_f32 v{d}, v{d}, v{144+p}")
    bf16r(d, 10)
gemv_fma8(64, 10, 40, 16, 8)
gemv_fma8(104, 10, 32, 16, 8)
reduce8_rg4(40); reduce8_rg4(32)
part_addr(8, 2, 9, 8192)
exec_low(2)
A("ds_write_b64 v8, v[40:41]")
A("ds_write_b64 v8, v[32:33] offset:512")
exec_all()
A("s_waitcnt lgkmcnt(0)")
A.label(".Lt3_c")
A("s_barrier")
A("s_cmp_lg_u32 s20, 4")
A("s_cbranch_scc1 .Lend")
for w in range(4):
    A(f"ds_read_b32 v{20+w}, v3 offset:{8192 + 128*w}")
    A(f"ds_read_b32 v{24+w}, v3 offset:{8192 + 512 + 128*w}")
A("s_waitcnt lgkmcnt(0)")
for b in (20, 24):
    A(f"v_add_f32 v{b}, v{b}, v{b+1}")
    A(f"v_add_f32 v{b+2}, v{b+2}, v{b+3}")
    A(f"v_add_f32 v{b}, v{b}, v{b+2}")
    bf16r(b, 8)
silu(20, 8)
bf16r(20, 8)
A("v_mul_f32 v20, v20, v24")
bf16r(20, 8)
desentinel(20, 8)
A("s_sub_u32 s28, s2, 160")
A("s_lshl_b32 s28, s28, 7")
A(f"s_add_u32 s28, s28, {WS_ACT}")
A("s_mov_b64 exec, 0xffffffff")
A("buffer_store_dword v20, v3, s[8:11], s28 offen sc0 sc1")
exec_all()
stamp(12)
A("s_branch .Lend")

A.label(".Lt4")
A("s_cmp_ge_u32 s2, 248")
A("s_cbranch_scc1 .Lend")
A("s_cmp_lt_u32 s20, 4")
A("s_cbranch_scc1 .Lt4_s")
mk_srd(44, 72, 1280)
A("s_sub_u32 s31, s2, 208")
A("s_lshl_b32 s31, s31, 4")
A("v_and_b32 v6, 15, v1")
A("v_add_u32 v6, s31, v6")
A("v_lshlrev_b32 v7, 1, v6")
A("v_lshlrev_b32 v6, 2, v6")
A("buffer_load_ushort v10, v7, s[44:47], 0 offen")
def iss():
    A(f"s_mov_b32 s29, {WS_MOD + 2560*2}")
    A(f"buffer_load_dword v12, v6, s[8:11], s29 offen sc1")
    A(f"s_mov_b32 s29, {WS_MOD + 2560*5}")
    A(f"buffer_load_dword v13, v6, s[8:11], s29 offen sc1")
    for j in range(16):
        A(f"s_mov_b32 s29, {WS_AP + 2560*j}")
        A(f"buffer_load_dword v{20+j}, v6, s[8:11], s29 offen sc1")
poll_loop(iss, [12, 13] + list(range(20, 36)), 53)
for j in range(1, 16):
    A(f"v_add_f32 v20, v20, v{20+j}")
bf16r(20, 8)
A("v_mul_f32 v20, v20, v12")
bf16r(20, 8)
A("v_lshlrev_b32 v10, 16, v10")
A("v_add_f32 v10, v10, v20")
bf16r(10, 8)
A("v_lshrrev_b32 v8, 1, v1")
A("s_mul_i32 s28, s27, 384")
A("v_add_u32 v8, s28, v8")
A("v_lshlrev_b32 v14, 2, v8")
A(f"s_mov_b32 s28, {WS_ACT}")
def iss():
    for p in range(12):
        A(f"buffer_load_dword v{20+p}, v14, s[8:11], s28 offen offset:{128*p} sc1")
poll_loop(iss, list(range(20, 32)), 53)
stamp(13)
gemv_fma8(64, 12, 40, 20, 8)
reduce8_rg2(40)
part_addr(8, 1, 9, 0)
exec_low(1)
A("ds_write_b64 v8, v[40:41]")
exec_all()
A("s_waitcnt lgkmcnt(0)")
A.label(".Lt4_s")
A("s_barrier")
A("s_cmp_lg_u32 s20, 4")
A("s_cbranch_scc1 .Lend")
A("v_and_b32 v8, 15, v1")
A("v_lshlrev_b32 v8, 2, v8")
for w in range(4):
    A(f"ds_read_b32 v{20+w}, v8 offset:{64*w}")
A("s_waitcnt lgkmcnt(0)")
A("v_add_f32 v20, v20, v21")
A("v_add_f32 v22, v22, v23")
A("v_add_f32 v20, v20, v22")
bf16r(20, 9)
A("v_mul_f32 v20, v20, v13")
bf16r(20, 9)
A("v_add_f32 v20, v20, v10")
A("v_cvt_pk_bf16_f32 v20, v20, v20")
mk_srd(68, 94, 1280)
A("s_mov_b64 exec, 0xffff")
A("buffer_store_short v20, v7, s[68:71], 0 offen")
exec_all()
stamp(14)
A.label(".Lend")
A("s_endpgm")

def fix_offsets(text):
    outl = []
    for line in text.split("\n"):
        m = re.match(r"^(\s*buffer_\w+ .*, s\[\d+:\d+\]), (\S+) offen offset:(\d+)(.*)$", line)
        if m and int(m.group(3)) >= 4096:
            off = int(m.group(3)); so = m.group(2)
            if so == "0":
                outl.append(f"    s_mov_b32 s100, {off}")
            else:
                outl.append(f"    s_add_u32 s100, {so}, {off}")
            outl.append(f"{m.group(1)}, s100 offen{m.group(4)}")
        else:
            outl.append(line)
    return "\n".join(outl)
body = fix_offsets(A.text())
launch = f"; @launch grid=(256,1,1) block=(512,1,1) lds={LDS_TOTAL}\n"
out = HEADER + launch + '.amdgcn_target "amdgcn-amd-amdhsa--gfx950"\n.text\n' + body + '.section .rodata,"a"\n.p2align 6\n' + kernel_desc(NAME, 256)
open(sys.argv[1], "w").write(out)
```
